```python
import torch

def _softmax(x, axis=-1):
    return torch.softmax(x, dim=axis)
def _gelu(x):
    return torch.nn.functional.gelu(x, approximate="tanh")
def _silu(x):
    return torch.nn.functional.silu(x)
def _sigmoid(x):
    return torch.sigmoid(x)
def _layernorm(x, axis=-1, eps=1e-5):
    m = x.mean(dim=axis, keepdim=True)
    v = x.var(dim=axis, keepdim=True, unbiased=False)
    return (x - m) / torch.sqrt(v + eps)
def _scatter_add(tgt, idx, src, axis=0):
    return tgt.clone().index_add_(axis, idx, src)
def _segment_sum(src, seg, n):
    out = torch.zeros((n,) + src.shape[1:], dtype=src.dtype)
    return out.index_add_(0, seg, src)
def _pad(x, pw):
    flat = tuple(v for pair in reversed(pw) for v in pair)
    return torch.nn.functional.pad(x, flat)

kernel_name = 'recurrent_scan__compressed_kv_cla__mixer_s_mlp__prompt'

def setup_inputs():

    _w = (lambda a: (lambda t: t.to(torch.bfloat16) if t.is_floating_point() else t)(torch.as_tensor(a)))
    def _A_setup():
        B, H, Sq, Sk, D, M = 1, 32, 2048, 2048, 128, 512
        Dc = 4 * D
        return {
            "x": _w((lambda *s: torch.randn(*s, dtype=torch.bfloat16) * 0.05)(B, Sq, M)),
            "c_kv": _w((lambda *s: torch.randn(*s, dtype=torch.bfloat16) * 0.2)(B, Sk, Dc)),
            "w_q": _w((lambda *s: torch.randn(*s, dtype=torch.bfloat16) * 3.2)(M, H, D) * (M ** -0.5)),
            "w_uk": _w((lambda *s: torch.randn(*s, dtype=torch.bfloat16) * 3.2)(Dc, H, D) * (Dc ** -0.5)),
            "w_uv": _w((lambda *s: torch.randn(*s, dtype=torch.bfloat16) * 0.2)(Dc, H, D) * (Dc ** -0.5)),
            "w_o": _w((lambda *s: torch.randn(*s, dtype=torch.bfloat16) * 0.2)(H, D, M) * ((H * D) ** -0.5)),
        }
    _A_in = _A_setup()

    def _B_setup():
        B, S, D, F = 1, 2048, 512, 1376
        return {
            "x":  _w((lambda *s: torch.randn(*s, dtype=torch.bfloat16) * 0.05)(B, S, D)),
            "w1": _w((lambda *s: torch.randn(*s, dtype=torch.bfloat16) * 3.2)(D, D) * (D ** -0.5)),
            "w2": _w((lambda *s: torch.randn(*s, dtype=torch.bfloat16) * 3.2)(D, D) * (D ** -0.5)),
            "w3": _w((lambda *s: torch.randn(*s, dtype=torch.bfloat16) * 3.2)(D, F) * (D ** -0.5)),
            "w4": _w((lambda *s: torch.randn(*s, dtype=torch.bfloat16) * 1.6)(F, D) * (F ** -0.5)),
        }
    _B_in = _B_setup()

    return {
        "A_x": _A_in["x"],
        "A_c_kv": _A_in["c_kv"],
        "A_w_q": _A_in["w_q"],
        "A_w_uk": _A_in["w_uk"],
        "A_w_uv": _A_in["w_uv"],
        "A_w_o": _A_in["w_o"],
        "B_x": _B_in["x"],
        "B_w1": _B_in["w1"],
        "B_w2": _B_in["w2"],
        "B_w3": _B_in["w3"],
        "B_w4": _B_in["w4"],
    }

def reference(A_x, A_c_kv, A_w_q, A_w_uk, A_w_uv, A_w_o, B_x, B_w1, B_w2, B_w3, B_w4):
    def _A_ref(x, c_kv, w_q, w_uk, w_uv, w_o):
        B, Sq, M = x.shape[0], x.shape[1], x.shape[2]
        Sk = c_kv.shape[1]
        H, D = w_q.shape[1], w_q.shape[2]
        q = torch.einsum("bqm,mhd->bhqd", x, w_q)
        k = torch.einsum("bkc,chd->bhkd", c_kv, w_uk)
        v = torch.einsum("bkc,chd->bhkd", c_kv, w_uv)
        scores = torch.einsum("bhqd,bhkd->bhqk", q, k) * (D ** -0.5)
        off = Sk - Sq
        qi = torch.arange(Sq)[:, None]
        kj = torch.arange(Sk)[None, :]
        cmask = kj <= (qi + off)
        scores = torch.where(cmask[None, None], scores, -1e9)
        p = _softmax(scores, axis=-1)
        ctx = torch.einsum("bhqk,bhkd->bhqd", p, v)
        return torch.einsum("bhqd,hdm->bqm", ctx, w_o)

    def _B_ref(x, w1, w2, w3, w4):
        B, S, D = x.shape
        h = _gelu(_layernorm(x, axis=-1) @ w1)
        c = D // 4
        g0 = _pad(h[:, :, 0*c:1*c], ((0, 0), (1, 0), (0, 0)))[:, :S, :]
        g1 = _pad(h[:, :, 1*c:2*c], ((0, 0), (0, 1), (0, 0)))[:, 1:, :]
        g2 = _pad(h[:, :, 2*c:3*c], ((0, 0), (2, 0), (0, 0)))[:, :S, :]
        g3 = _pad(h[:, :, 3*c:   ], ((0, 0), (0, 2), (0, 0)))[:, 2:, :]
        hs = torch.concatenate([g0, g1, g2, g3], axis=-1) @ w2
        x1 = x + hs
        h2 = _gelu(_layernorm(x1, axis=-1) @ w3) @ w4
        return x1 + h2

    x = A_x
    xn = _layernorm(x, axis=-1)
    s = _A_ref(xn, A_c_kv, A_w_q, A_w_uk, A_w_uv, A_w_o)
    g = _silu(_B_ref(xn, B_w1, B_w2, B_w3, B_w4))
    return x + s * g
```

```python
import re

TRANS = ("v_exp_f32", "v_log_f32", "v_rcp_f32", "v_rsq_f32", "v_sqrt_f32", "v_sin_f32", "v_cos_f32")


def V(n, c=1):
    return f"v{n}" if c == 1 else f"v[{n}:{n + c - 1}]"


def S(n, c=1):
    return f"s{n}" if c == 1 else f"s[{n}:{n + c - 1}]"


_REG = re.compile(r"^(v|s|a)(?:(\d+)|\[(\d+):(\d+)\])$")


def regs_of(op):
    op = op.strip()
    neg = op.lstrip("-")
    if neg.startswith("|") and neg.endswith("|"):
        neg = neg[1:-1]
    m = _REG.match(neg)
    if m:
        k = m.group(1)
        if m.group(2) is not None:
            return {(k, int(m.group(2)))}
        return {(k, i) for i in range(int(m.group(3)), int(m.group(4)) + 1)}
    if neg in ("vcc", "vcc_lo", "vcc_hi"):
        return {("x", "vcc")}
    if neg in ("exec", "exec_lo", "exec_hi"):
        return {("x", "exec")}
    if neg == "m0":
        return {("x", "m0")}
    if neg == "scc":
        return {("x", "scc")}
    return set()


class Ins:
    __slots__ = ("text", "mn", "ops", "mods", "kind", "rd", "wr", "passes", "srcC", "srcAB", "states",
                 "wide_store", "dpp", "trans", "lds_dma", "target", "store_data")

    def __init__(self, text):
        self.text = text
        t = text.split(";")[0].strip()
        parts = t.split(None, 1)
        self.mn = parts[0]
        rest = parts[1] if len(parts) > 1 else ""
        toks = [x.strip() for x in rest.split(",")] if rest else []
        self.mods = ""
        if toks:
            last = toks[-1].split(None, 1)
            if len(last) > 1 and not toks[-1].startswith("hwreg"):
                toks[-1] = last[0]
                self.mods = last[1]
        self.ops = toks
        mn = self.mn
        self.rd, self.wr = set(), set()
        self.passes = 0
        self.srcC, self.srcAB = set(), set()
        self.states = 1
        self.wide_store = False
        self.store_data = set()
        self.dpp = False
        self.trans = False
        self.lds_dma = False
        self.target = None
        R = [regs_of(o) for o in toks]
        if mn.startswith("v_mfma"):
            self.kind = "mfma"
            self.passes = 8 if "32x32" in mn else 4
            self.wr = R[0]
            self.srcAB = R[1] | R[2]
            self.srcC = R[3]
            self.rd = self.srcAB | self.srcC
        elif mn.startswith("v_"):
            self.kind = "valu"
            base = mn.replace("_e32", "").replace("_e64", "").replace("_dpp", "")
            self.trans = base in TRANS
            allm = self.mods + " " + " ".join(toks)
            self.dpp = ("row_" in allm) or ("quad_perm" in allm) or ("wave_" in allm)
            if base.startswith("v_cmp"):
                self.wr = R[0]
                for r in R[1:]:
                    self.rd |= r
            elif base.startswith("v_permlane") and base.endswith("swap_b32"):
                self.wr = R[0] | R[1]
                self.rd = R[0] | R[1]
            elif base in ("v_add_co_u32", "v_sub_co_u32"):
                self.wr = R[0] | R[1]
                for r in R[2:]:
                    self.rd |= r
            elif base in ("v_addc_co_u32",):
                self.wr = R[0] | R[1]
                for r in R[2:]:
                    self.rd |= r
            else:
                self.wr = R[0]
                for r in R[1:]:
                    self.rd |= r
                if base == "v_cndmask_b32" and len(toks) == 3:
                    self.rd |= {("x", "vcc")}
                if base in ("v_fmac_f32", "v_mac_f32", "v_pk_fmac_f16", "v_dot2c_f32_bf16", "v_writelane_b32"):
                    self.rd |= R[0]
                if self.dpp:
                    self.rd |= R[0]
        elif mn.startswith("buffer_") or mn.startswith("global_"):
            self.kind = "vmem"
            lds = re.search(r"\blds\b", self.mods) is not None
            if mn.startswith("buffer_load"):
                if lds:
                    self.lds_dma = True
                    for r in R:
                        self.rd |= r
                    self.rd |= {("x", "m0")}
                else:
                    self.wr = R[0]
                    for r in R[1:]:
                        self.rd |= r
            elif mn.startswith("buffer_store") or mn.startswith("buffer_atomic"):
                for r in R:
                    self.rd |= r
                self.store_data = R[0]
                self.wide_store = ("x3" in mn or "x4" in mn)
            elif mn in ("buffer_wbl2", "buffer_inv"):
                pass
            else:
                raise ValueError("unhandled vmem " + text)
        elif mn.startswith("ds_"):
            self.kind = "ds"
            if mn.startswith("ds_read") or mn.startswith("ds_bpermute") or mn.startswith("ds_swizzle"):
                self.wr = R[0]
                for r in R[1:]:
                    self.rd |= r
            else:
                for r in R:
                    self.rd |= r
        elif mn == "s_nop":
            self.kind = "nop"
            self.states = int(toks[0], 0) + 1
        elif mn.startswith("s_cbranch") or mn == "s_branch":
            self.kind = "branch"
            self.target = toks[0]
        elif mn.startswith("s_"):
            self.kind = "salu"
            if mn.startswith("s_cmp") or mn in ("s_waitcnt", "s_barrier", "s_endpgm", "s_setprio", "s_sleep",
                                                "s_bitcmp1_b32", "s_bitcmp0_b32"):
                for r in R:
                    self.rd |= r
            else:
                if R:
                    self.wr = R[0]
                for r in R[1:]:
                    self.rd |= r
                if "saveexec" in mn:
                    self.wr |= {("x", "exec")}
        else:
            raise ValueError("unknown instruction " + text)


def need(p, c):
    n = 0
    vw = {r for r in p.wr if r[0] == "v"}
    if p.kind == "valu":
        if c.kind == "mfma" and (vw & c.rd):
            n = max(n, 2)
        if c.kind == "valu":
            if c.dpp and (vw & c.rd):
                n = max(n, 2)
            if c.mn.startswith("v_permlane") and (vw & c.rd):
                n = max(n, 2)
            if (c.mn.startswith("v_readlane") or c.mn.startswith("v_readfirstlane")) and (vw & c.rd):
                n = max(n, 1)
            if p.trans and not c.trans and (vw & c.rd):
                n = max(n, 1)
        sw = {r for r in p.wr if r[0] in ("s", "x")}
        if sw:
            if c.kind in ("valu", "mfma") and (sw & c.rd):
                n = max(n, 4 if c.mn.startswith(("v_readlane", "v_writelane")) else 2)
            if c.kind == "vmem" and (sw & c.rd):
                n = max(n, 5)
            if ("x", "exec") in sw:
                if c.kind == "mfma":
                    n = max(n, 4)
                if c.kind == "valu" and c.dpp:
                    n = max(n, 5)
                if c.kind == "valu" and c.mn.startswith(("v_readlane", "v_readfirstlane", "v_writelane", "v_permlane")):
                    n = max(n, 4)
    if p.kind == "mfma":
        big = 12 if p.passes == 8 else 8
        ovl = 10 if p.passes == 8 else 6
        if c.kind == "mfma":
            if vw & c.srcAB:
                n = max(n, big)
            if vw & c.srcC:
                if not (c.srcC == p.wr and c.passes == p.passes):
                    n = max(n, ovl)
            elif (vw & c.wr):
                n = max(n, big)
        elif c.kind in ("valu", "vmem", "ds"):
            if vw & (c.rd | c.wr):
                n = max(n, big)
        if c.kind == "valu" and (p.srcC & c.wr):
            n = max(n, 7 if p.passes == 8 else 3)
    if p.kind == "vmem" and p.wide_store:
        cw = {r for r in c.wr if r[0] == "v"}
        if cw & p.store_data:
            n = max(n, 2 if c.kind == "valu" else 1)
    if p.kind == "salu" and ("x", "m0") in p.wr and c.lds_dma:
        n = max(n, 1)
    return n


WINDOW = 24


class Asm:
    def __init__(self):
        self.items = []
        self.npad = 0

    def __call__(self, text):
        for line in text.strip().split("\n"):
            line = line.strip()
            if not line:
                continue
            if line.startswith(";"):
                self.items.append(("c", line))
            elif line.endswith(":"):
                self.items.append(("l", line[:-1]))
            else:
                self.emit(Ins(line))

    def raw(self, text):
        self.items.append(("c!", text))

    def comment(self, text):
        self.items.append(("c", "; " + text))

    def label(self, name):
        self.items.append(("l", name))

    def _prev(self):
        d = 0
        for kind, it in reversed(self.items):
            if kind != "i":
                if kind == "c!":
                    return
                continue
            if it.mn in ("s_endpgm", "s_branch"):
                return
            yield it, d
            d += it.states
            if d > WINDOW:
                return

    def emit(self, ins):
        pad = 0
        for p, d in self._prev():
            n = need(p, ins)
            if n > d:
                pad = max(pad, n - d)
        if pad:
            self.npad += pad
            while pad > 0:
                k = min(pad, 16)
                self.items.append(("i", Ins(f"s_nop {k - 1}")))
                pad -= k
        self.items.append(("i", ins))

    def check_branches(self):
        idx = {it: i for i, (k, it) in enumerate(self.items) if k == "l"}
        problems = []
        ins_only = self.items
        for i, (k, it) in enumerate(ins_only):
            if k != "i" or it.kind != "branch" or it.target not in idx:
                continue
            before = []
            d = 0
            j = i
            while j >= 0 and d <= WINDOW:
                kk, x = ins_only[j]
                if kk == "i":
                    if j != i and x.mn in ("s_endpgm", "s_branch"):
                        break
                    before.append((x, d))
                    d += x.states
                elif kk == "c!":
                    break
                j -= 1
            j = idx[it.target]
            d2 = 0
            while j < len(ins_only) and d2 <= WINDOW:
                kk, x = ins_only[j]
                if kk == "i":
                    for p, dp in before:
                        dist = dp + d2
                        if p is it:
                            continue
                        n = need(p, x)
                        if n > dist:
                            problems.append(f"branch {it.text}: {p.text}  ->  {x.text}: need {n} have {dist}")
                    d2 += x.states
                    if x.mn in ("s_endpgm", "s_branch"):
                        break
                j += 1
        return problems

    def text(self):
        out = []
        for k, it in self.items:
            if k == "i":
                out.append("    " + it.text)
            elif k == "l":
                out.append(it + ":")
            else:
                out.append(it)
        return "\n".join(out) + "\n"

    def count(self):
        return sum(1 for k, _ in self.items if k == "i")
```

```python
from asmlib import Asm, V, S

NAME = "recurrent_scan__compressed_kv_cla__mixer_s_mlp__prompt"

KA_X, KA_CKV, KA_WQ, KA_WUK, KA_WUV, KA_WO = 0, 8, 16, 24, 32, 40
KA_W1, KA_W2, KA_W3, KA_W4, KA_OUT, KA_DBG, KA_WS = 56, 64, 72, 80, 88, 96, 104

WS_XNF = 0x0
WS_XN2F = 0x200000
WS_X1F = 0x400000
WS_H3F = 0x600000
WS_WF = 0xC00000
SZ_WF = 2400 * 1024
WS_KV = 0x1000000
WS_CTXF = 0x3000000
WS_SIZE = 0x10000000

SZ_X = 2097152
SZ_W = 4194304
SZ_W12 = 524288
SZ_W34 = 1409024


def srd(a, d, base, nbytes):
    a(f"s_mov_b32 s{d}, s{base}")
    a(f"s_mov_b32 s{d + 1}, s{base + 1}")
    a(f"s_mov_b32 s{d + 2}, {hex(nbytes)}")
    a(f"s_mov_b32 s{d + 3}, 0x00020000")


def wave_sum(a, v, sdst):
    for sh in (1, 2, 4, 8):
        a(f"v_add_f32_dpp v{v}, v{v}, v{v} row_shr:{sh} row_mask:0xf bank_mask:0xf bound_ctrl:0")
    a(f"v_add_f32_dpp v{v}, v{v}, v{v} row_bcast:15 row_mask:0xa bank_mask:0xf")
    a(f"v_add_f32_dpp v{v}, v{v}, v{v} row_bcast:31 row_mask:0xc bank_mask:0xf")
    a(f"v_readlane_b32 s{sdst}, v{v}, 63")


def rne1(a, v):
    a(f"v_cvt_pk_bf16_f32 v{v}, v{v}, v{v}")
    a(f"v_and_b32 v{v}, 0xffff0000, v{v}")


def unpack8(a, pk, x):
    for i in range(4):
        a(f"v_lshlrev_b32 v{x + 2 * i}, 16, v{pk + i}")
        a(f"v_and_b32 v{x + 2 * i + 1}, 0xffff0000, v{pk + i}")


def ln_row(a, x, t, pk, s0, s_eps, s_inv):
    a(f"v_add_f32 v{t}, v{x}, v{x + 1}")
    a(f"v_add_f32 v{t + 1}, v{x + 2}, v{x + 3}")
    a(f"v_add_f32 v{t + 2}, v{x + 4}, v{x + 5}")
    a(f"v_add_f32 v{t + 3}, v{x + 6}, v{x + 7}")
    a(f"v_add_f32 v{t}, v{t}, v{t + 1}")
    a(f"v_add_f32 v{t + 2}, v{t + 2}, v{t + 3}")
    a(f"v_add_f32 v{t}, v{t}, v{t + 2}")
    wave_sum(a, t, s0)
    a(f"v_mov_b32 v{t + 8}, s{s_inv}")
    a(f"v_mul_f32 v{t + 8}, s{s0}, v{t + 8}")
    for i in range(8):
        a(f"v_sub_f32 v{t + i}, v{x + i}, v{t + 8}")
    a(f"v_mul_f32 v{t + 9}, v{t}, v{t}")
    for i in range(1, 8):
        a(f"v_fmac_f32 v{t + 9}, v{t + i}, v{t + i}")
    wave_sum(a, t + 9, s0)
    a(f"v_mov_b32 v{t + 9}, s{s_inv}")
    a(f"v_mul_f32 v{t + 9}, s{s0}, v{t + 9}")
    rne1(a, t + 8)
    rne1(a, t + 9)
    a(f"v_add_f32 v{t + 9}, s{s_eps}, v{t + 9}")
    rne1(a, t + 9)
    a(f"v_sqrt_f32 v{t + 9}, v{t + 9}")
    rne1(a, t + 9)
    a(f"v_rcp_f32 v{t + 9}, v{t + 9}")
    for i in range(8):
        a(f"v_sub_f32 v{t + i}, v{x + i}, v{t + 8}")
    for i in range(4):
        a(f"v_cvt_pk_bf16_f32 v{pk + i}, v{t + 2 * i}, v{t + 2 * i + 1}")
    unpack8(a, pk, t)
    for i in range(8):
        a(f"v_mul_f32 v{t + i}, v{t + i}, v{t + 9}")
    for i in range(4):
        a(f"v_cvt_pk_bf16_f32 v{pk + i}, v{t + 2 * i}, v{t + 2 * i + 1}")


def kernel_begin(a, label):
    a.raw(f".globl {label}\n.p2align 8\n.type {label},@function")
    a.label(label)


def kernel_desc(label, vgpr=256, sgpr=102):
    return f""".amdhsa_kernel {label}
  .amdhsa_next_free_vgpr {vgpr}
  .amdhsa_next_free_sgpr {sgpr}
  .amdhsa_accum_offset {(vgpr + 3) // 4 * 4}
  .amdhsa_group_segment_fixed_size 0
  .amdhsa_kernarg_size 112
  .amdhsa_user_sgpr_count 2
  .amdhsa_user_sgpr_kernarg_segment_ptr 1
  .amdhsa_system_sgpr_workgroup_id_x 1
.end_amdhsa_kernel
"""


import os
PROF = int(os.environ.get("PROF", "0"))
PROF_WAVE = int(os.environ.get("PROF_WAVE", "0"))
sPROF = 78
WS_PROF = 0x8000000


def stamp(a, i):
    if not PROF:
        return
    if i == 0:
        a("s_memrealtime s[96:97]")
        a("s_waitcnt lgkmcnt(0)")
        a("s_mov_b32 s94, s96")
    a("s_memtime s[96:97]")
    a("s_waitcnt lgkmcnt(0)")
    a(f"s_mov_b32 s{sPROF + i}, s96")


def prof_dump(a, n, sID, sW, launch=0):
    if not PROF:
        return
    lab = f"PROF_SKIP_{len(a.items)}"
    a(f"s_cmp_lg_u32 s{sW}, {PROF_WAVE}")
    a(f"s_cbranch_scc1 {lab}")
    a("s_memrealtime s[96:97]")
    a("s_waitcnt lgkmcnt(0)")
    a("s_mov_b32 s95, s96")
    a(f"s_load_dwordx2 s[96:97], s[0:1], {KA_WS}")
    a("s_waitcnt lgkmcnt(0)")
    a(f"s_mov_b32 s98, {hex(WS_SIZE)}")
    a("s_mov_b32 s99, 0x00020000")
    a(f"s_lshl_b32 s77, s{sID}, 6")
    a(f"s_add_u32 s77, s77, {WS_PROF + launch * 0x10000}")
    a("v_mov_b32 v0, 0")
    a("v_mov_b32 v1, s94")
    a("buffer_store_dword v1, v0, s[96:99], s77 offen")
    a("v_mov_b32 v1, s95")
    a("buffer_store_dword v1, v0, s[96:99], s77 offen offset:4")
    for i in range(1, n):
        a(f"s_sub_u32 s{sPROF + i}, s{sPROF + i}, s{sPROF}")
        a(f"v_mov_b32 v1, s{sPROF + i}")
        a(f"buffer_store_dword v1, v0, s[96:99], s77 offen offset:{4 * (i + 1)}")
    a("s_waitcnt vmcnt(0)")
    a.label(lab)

LAUNCH = [0]
```

```python
import sys, importlib
sys.path.insert(0, "work")
from gen_common import *

def header(launches):
    ref = open(f"cdna_kernels/{NAME}.s.ref").read().split("\n")
    lines = []
    for l in ref:
        if l.startswith("; @launch") or l.startswith("; Override launch") or l.startswith("; grid=ceil"):
            break
        lines.append(l)
    for lab, lds in launches:
        lines.append(f"; @launch kernel={lab} grid=(256,1,1) block=(512,1,1) lds={lds}")
    lines.append('.amdgcn_target "amdgcn-amd-amdhsa--gfx950"')
    lines.append(".text")
    return "\n".join(lines) + "\n"

def main(out, mods):
    a = Asm()
    launches = []
    import gen_common
    for k, m in enumerate(mods):
        gen_common.LAUNCH[0] = k
        mod = importlib.import_module(m)
        launches.append(mod.gen(a))
    pr = a.check_branches()
    for p in pr:
        print("HAZARD:", p)
    txt = header(launches) + a.text() + '.section .rodata,"a"\n'
    for lab, _ in launches:
        txt += ".p2align 6\n" + kernel_desc(lab)
    open(out, "w").write(txt)
    print("instructions", a.count(), "padding states", a.npad, "bytes", len(txt))

if __name__ == "__main__":
    out = sys.argv[1]
    mods = sys.argv[2:] or ["gen_l1", "gen_l2", "gen_l3"]
    main(out, mods)
```

```python
from asmlib import Asm, V, S

NAME = "recurrent_scan__compressed_kv_cla__mixer_s_mlp__prompt"

KA_X, KA_CKV, KA_WQ, KA_WUK, KA_WUV, KA_WO = 0, 8, 16, 24, 32, 40
KA_W1, KA_W2, KA_W3, KA_W4, KA_OUT, KA_DBG, KA_WS = 56, 64, 72, 80, 88, 96, 104

WS_XNF = 0x0
WS_XN2F = 0x200000
WS_X1F = 0x400000
WS_H3F = 0x600000
WS_WF = 0xC00000
SZ_WF = 2400 * 1024
WS_KV = 0x1000000
WS_CTXF = 0x3000000
WS_SIZE = 0x10000000
import os as _os
WS_BASE = int(_os.environ.get("WS_BASE", "0"), 0)
WS_XNF += WS_BASE; WS_XN2F += WS_BASE; WS_X1F += WS_BASE; WS_H3F += WS_BASE
WS_WF += WS_BASE; WS_KV += WS_BASE; WS_CTXF += WS_BASE

SZ_X = 2097152
SZ_W = 4194304
SZ_W12 = 524288
SZ_W34 = 1409024


def srd(a, d, base, nbytes):
    a(f"s_mov_b32 s{d}, s{base}")
    a(f"s_mov_b32 s{d + 1}, s{base + 1}")
    a(f"s_mov_b32 s{d + 2}, {hex(nbytes)}")
    a(f"s_mov_b32 s{d + 3}, 0x00020000")


def wave_sum(a, v, sdst):
    for sh in (1, 2, 4, 8):
        a(f"v_add_f32_dpp v{v}, v{v}, v{v} row_shr:{sh} row_mask:0xf bank_mask:0xf bound_ctrl:0")
    a(f"v_add_f32_dpp v{v}, v{v}, v{v} row_bcast:15 row_mask:0xa bank_mask:0xf")
    a(f"v_add_f32_dpp v{v}, v{v}, v{v} row_bcast:31 row_mask:0xc bank_mask:0xf")
    a(f"v_readlane_b32 s{sdst}, v{v}, 63")


def rne1(a, v):
    a(f"v_cvt_pk_bf16_f32 v{v}, v{v}, v{v}")
    a(f"v_and_b32 v{v}, 0xffff0000, v{v}")


def unpack8(a, pk, x):
    for i in range(4):
        a(f"v_lshlrev_b32 v{x + 2 * i}, 16, v{pk + i}")
        a(f"v_and_b32 v{x + 2 * i + 1}, 0xffff0000, v{pk + i}")


def ln_row(a, x, t, pk, s0, s_eps, s_inv):
    a(f"v_add_f32 v{t}, v{x}, v{x + 1}")
    a(f"v_add_f32 v{t + 1}, v{x + 2}, v{x + 3}")
    a(f"v_add_f32 v{t + 2}, v{x + 4}, v{x + 5}")
    a(f"v_add_f32 v{t + 3}, v{x + 6}, v{x + 7}")
    a(f"v_add_f32 v{t}, v{t}, v{t + 1}")
    a(f"v_add_f32 v{t + 2}, v{t + 2}, v{t + 3}")
    a(f"v_add_f32 v{t}, v{t}, v{t + 2}")
    wave_sum(a, t, s0)
    a(f"v_mov_b32 v{t + 8}, s{s_inv}")
    a(f"v_mul_f32 v{t + 8}, s{s0}, v{t + 8}")
    for i in range(8):
        a(f"v_sub_f32 v{t + i}, v{x + i}, v{t + 8}")
    a(f"v_mul_f32 v{t + 9}, v{t}, v{t}")
    for i in range(1, 8):
        a(f"v_fmac_f32 v{t + 9}, v{t + i}, v{t + i}")
    wave_sum(a, t + 9, s0)
    a(f"v_mov_b32 v{t + 9}, s{s_inv}")
    a(f"v_mul_f32 v{t + 9}, s{s0}, v{t + 9}")
    rne1(a, t + 8)
    rne1(a, t + 9)
    a(f"v_add_f32 v{t + 9}, s{s_eps}, v{t + 9}")
    rne1(a, t + 9)
    a(f"v_sqrt_f32 v{t + 9}, v{t + 9}")
    rne1(a, t + 9)
    a(f"v_rcp_f32 v{t + 9}, v{t + 9}")
    for i in range(8):
        a(f"v_sub_f32 v{t + i}, v{x + i}, v{t + 8}")
    for i in range(4):
        a(f"v_cvt_pk_bf16_f32 v{pk + i}, v{t + 2 * i}, v{t + 2 * i + 1}")
    unpack8(a, pk, t)
    for i in range(8):
        a(f"v_mul_f32 v{t + i}, v{t + i}, v{t + 9}")
    for i in range(4):
        a(f"v_cvt_pk_bf16_f32 v{pk + i}, v{t + 2 * i}, v{t + 2 * i + 1}")


def kernel_begin(a, label):
    a.raw(f".globl {label}\n.p2align 8\n.type {label},@function")
    a.label(label)


def kernel_desc(label, vgpr=256, sgpr=102):
    return f""".amdhsa_kernel {label}
  .amdhsa_next_free_vgpr {vgpr}
  .amdhsa_next_free_sgpr {sgpr}
  .amdhsa_accum_offset {(vgpr + 3) // 4 * 4}
  .amdhsa_group_segment_fixed_size 0
  .amdhsa_kernarg_size 112
  .amdhsa_user_sgpr_count 2
  .amdhsa_user_sgpr_kernarg_segment_ptr 1
  .amdhsa_system_sgpr_workgroup_id_x 1
.end_amdhsa_kernel
"""


import os
PROF = int(os.environ.get("PROF", "0"))
PROF_WAVE = int(os.environ.get("PROF_WAVE", "0"))
sPROF = 78
WS_PROF = 0x8000000


def stamp(a, i):
    if not PROF:
        return
    if i == 0:
        a("s_memrealtime s[96:97]")
        a("s_waitcnt lgkmcnt(0)")
        a("s_mov_b32 s94, s96")
    a("s_memtime s[96:97]")
    a("s_waitcnt lgkmcnt(0)")
    a(f"s_mov_b32 s{sPROF + i}, s96")


def prof_dump(a, n, sID, sW, launch=0):
    if not PROF:
        return
    lab = f"PROF_SKIP_{len(a.items)}"
    a(f"s_cmp_lg_u32 s{sW}, {PROF_WAVE}")
    a(f"s_cbranch_scc1 {lab}")
    a("s_memrealtime s[96:97]")
    a("s_waitcnt lgkmcnt(0)")
    a("s_mov_b32 s95, s96")
    a(f"s_load_dwordx2 s[96:97], s[0:1], {KA_WS}")
    a("s_waitcnt lgkmcnt(0)")
    a(f"s_mov_b32 s98, {hex(WS_SIZE)}")
    a("s_mov_b32 s99, 0x00020000")
    a(f"s_lshl_b32 s77, s{sID}, 6")
    a(f"s_add_u32 s77, s77, {WS_PROF + launch * 0x10000}")
    a("v_mov_b32 v0, 0")
    a("v_mov_b32 v1, s94")
    a("buffer_store_dword v1, v0, s[96:99], s77 offen")
    a("v_mov_b32 v1, s95")
    a("buffer_store_dword v1, v0, s[96:99], s77 offen offset:4")
    for i in range(1, n):
        a(f"s_sub_u32 s{sPROF + i}, s{sPROF + i}, s{sPROF}")
        a(f"v_mov_b32 v1, s{sPROF + i}")
        a(f"buffer_store_dword v1, v0, s[96:99], s77 offen offset:{4 * (i + 1)}")
    a("s_waitcnt vmcnt(0)")
    a.label(lab)

LAUNCH = [0]
```

```python
from asmlib import Asm, V, S

NAME = "recurrent_scan__compressed_kv_cla__mixer_s_mlp__prompt"

KA_X, KA_CKV, KA_WQ, KA_WUK, KA_WUV, KA_WO = 0, 8, 16, 24, 32, 40
KA_W1, KA_W2, KA_W3, KA_W4, KA_OUT, KA_DBG, KA_WS = 56, 64, 72, 80, 88, 96, 104

WS_XNF = 0x0
WS_XN2F = 0x200000
WS_X1F = 0x400000
WS_H3F = 0x600000
WS_WF = 0xC00000
SZ_WF = 2400 * 1024
WS_FLAG = 0xE80000
WS_KV = 0x1000000
WS_CTXF = 0x3000000
WS_SLAB = 0x4000000
SZ_SLAB = 0x800000
WS_SIZE = 0x10000000
import os as _os
WS_BASE = int(_os.environ.get("WS_BASE", "0"), 0)
WS_XNF += WS_BASE; WS_XN2F += WS_BASE; WS_X1F += WS_BASE; WS_H3F += WS_BASE
WS_WF += WS_BASE; WS_FLAG += WS_BASE; WS_KV += WS_BASE; WS_CTXF += WS_BASE; WS_SLAB += WS_BASE

SZ_X = 2097152
SZ_W = 4194304
SZ_W12 = 524288
SZ_W34 = 1409024


def srd(a, d, base, nbytes):
    a(f"s_mov_b32 s{d}, s{base}")
    a(f"s_mov_b32 s{d + 1}, s{base + 1}")
    a(f"s_mov_b32 s{d + 2}, {hex(nbytes)}")
    a(f"s_mov_b32 s{d + 3}, 0x00020000")


def wave_sum(a, v, sdst):
    for sh in (1, 2, 4, 8):
        a(f"v_add_f32_dpp v{v}, v{v}, v{v} row_shr:{sh} row_mask:0xf bank_mask:0xf bound_ctrl:0")
    a(f"v_add_f32_dpp v{v}, v{v}, v{v} row_bcast:15 row_mask:0xa bank_mask:0xf")
    a(f"v_add_f32_dpp v{v}, v{v}, v{v} row_bcast:31 row_mask:0xc bank_mask:0xf")
    a(f"v_readlane_b32 s{sdst}, v{v}, 63")


def rne1(a, v):
    a(f"v_cvt_pk_bf16_f32 v{v}, v{v}, v{v}")
    a(f"v_and_b32 v{v}, 0xffff0000, v{v}")


def unpack8(a, pk, x):
    for i in range(4):
        a(f"v_lshlrev_b32 v{x + 2 * i}, 16, v{pk + i}")
        a(f"v_and_b32 v{x + 2 * i + 1}, 0xffff0000, v{pk + i}")


def ln_row(a, x, t, pk, s0, s_eps, s_inv):
    a(f"v_add_f32 v{t}, v{x}, v{x + 1}")
    a(f"v_add_f32 v{t + 1}, v{x + 2}, v{x + 3}")
    a(f"v_add_f32 v{t + 2}, v{x + 4}, v{x + 5}")
    a(f"v_add_f32 v{t + 3}, v{x + 6}, v{x + 7}")
    a(f"v_add_f32 v{t}, v{t}, v{t + 1}")
    a(f"v_add_f32 v{t + 2}, v{t + 2}, v{t + 3}")
    a(f"v_add_f32 v{t}, v{t}, v{t + 2}")
    wave_sum(a, t, s0)
    a(f"v_mov_b32 v{t + 8}, s{s_inv}")
    a(f"v_mul_f32 v{t + 8}, s{s0}, v{t + 8}")
    for i in range(8):
        a(f"v_sub_f32 v{t + i}, v{x + i}, v{t + 8}")
    a(f"v_mul_f32 v{t + 9}, v{t}, v{t}")
    for i in range(1, 8):
        a(f"v_fmac_f32 v{t + 9}, v{t + i}, v{t + i}")
    wave_sum(a, t + 9, s0)
    a(f"v_mov_b32 v{t + 9}, s{s_inv}")
    a(f"v_mul_f32 v{t + 9}, s{s0}, v{t + 9}")
    rne1(a, t + 8)
    rne1(a, t + 9)
    a(f"v_add_f32 v{t + 9}, s{s_eps}, v{t + 9}")
    rne1(a, t + 9)
    a(f"v_sqrt_f32 v{t + 9}, v{t + 9}")
    rne1(a, t + 9)
    a(f"v_rcp_f32 v{t + 9}, v{t + 9}")
    for i in range(8):
        a(f"v_sub_f32 v{t + i}, v{x + i}, v{t + 8}")
    for i in range(4):
        a(f"v_cvt_pk_bf16_f32 v{pk + i}, v{t + 2 * i}, v{t + 2 * i + 1}")
    unpack8(a, pk, t)
    for i in range(8):
        a(f"v_mul_f32 v{t + i}, v{t + i}, v{t + 9}")
    for i in range(4):
        a(f"v_cvt_pk_bf16_f32 v{pk + i}, v{t + 2 * i}, v{t + 2 * i + 1}")


def kernel_begin(a, label):
    a.raw(f".globl {label}\n.p2align 8\n.type {label},@function")
    a.label(label)


def kernel_desc(label, vgpr=256, sgpr=102):
    return f""".amdhsa_kernel {label}
  .amdhsa_next_free_vgpr {vgpr}
  .amdhsa_next_free_sgpr {sgpr}
  .amdhsa_accum_offset {(vgpr + 3) // 4 * 4}
  .amdhsa_group_segment_fixed_size 0
  .amdhsa_kernarg_size 112
  .amdhsa_user_sgpr_count 2
  .amdhsa_user_sgpr_kernarg_segment_ptr 1
  .amdhsa_system_sgpr_workgroup_id_x 1
.end_amdhsa_kernel
"""


import os
PROF = int(os.environ.get("PROF", "0"))
PROF_WAVE = int(os.environ.get("PROF_WAVE", "0"))
sPROF = 78
WS_PROF = 0x8000000


def stamp(a, i):
    if not PROF:
        return
    if i == 0:
        a("s_memrealtime s[96:97]")
        a("s_waitcnt lgkmcnt(0)")
        a("s_mov_b32 s94, s96")
    a("s_memtime s[96:97]")
    a("s_waitcnt lgkmcnt(0)")
    a(f"s_mov_b32 s{sPROF + i}, s96")


def prof_dump(a, n, sID, sW, launch=0):
    if not PROF:
        return
    lab = f"PROF_SKIP_{len(a.items)}"
    a(f"s_cmp_lg_u32 s{sW}, {PROF_WAVE}")
    a(f"s_cbranch_scc1 {lab}")
    a("s_memrealtime s[96:97]")
    a("s_waitcnt lgkmcnt(0)")
    a("s_mov_b32 s95, s96")
    a(f"s_load_dwordx2 s[96:97], s[0:1], {KA_WS}")
    a("s_waitcnt lgkmcnt(0)")
    a(f"s_mov_b32 s98, {hex(WS_SIZE)}")
    a("s_mov_b32 s99, 0x00020000")
    a(f"s_lshl_b32 s77, s{sID}, 6")
    a(f"s_add_u32 s77, s77, {WS_PROF + launch * 0x10000}")
    a("v_mov_b32 v0, 0")
    a("v_mov_b32 v1, s94")
    a("buffer_store_dword v1, v0, s[96:99], s77 offen")
    a("v_mov_b32 v1, s95")
    a("buffer_store_dword v1, v0, s[96:99], s77 offen offset:4")
    for i in range(1, n):
        a(f"s_sub_u32 s{sPROF + i}, s{sPROF + i}, s{sPROF}")
        a(f"v_mov_b32 v1, s{sPROF + i}")
        a(f"buffer_store_dword v1, v0, s[96:99], s77 offen offset:{4 * (i + 1)}")
    a("s_waitcnt vmcnt(0)")
    a.label(lab)

LAUNCH = [0]
```

```python
import re

TRANS = ("v_exp_f32", "v_log_f32", "v_rcp_f32", "v_rsq_f32", "v_sqrt_f32", "v_sin_f32", "v_cos_f32")


def V(n, c=1):
    return f"v{n}" if c == 1 else f"v[{n}:{n + c - 1}]"


def S(n, c=1):
    return f"s{n}" if c == 1 else f"s[{n}:{n + c - 1}]"


_REG = re.compile(r"^(v|s|a)(?:(\d+)|\[(\d+):(\d+)\])$")


def regs_of(op):
    op = op.strip()
    neg = op.lstrip("-")
    if neg.startswith("|") and neg.endswith("|"):
        neg = neg[1:-1]
    m = _REG.match(neg)
    if m:
        k = m.group(1)
        if m.group(2) is not None:
            return {(k, int(m.group(2)))}
        return {(k, i) for i in range(int(m.group(3)), int(m.group(4)) + 1)}
    if neg in ("vcc", "vcc_lo", "vcc_hi"):
        return {("x", "vcc")}
    if neg in ("exec", "exec_lo", "exec_hi"):
        return {("x", "exec")}
    if neg == "m0":
        return {("x", "m0")}
    if neg == "scc":
        return {("x", "scc")}
    return set()


class Ins:
    __slots__ = ("text", "mn", "ops", "mods", "kind", "rd", "wr", "passes", "srcC", "srcAB", "states",
                 "wide_store", "dpp", "trans", "lds_dma", "target", "store_data")

    def __init__(self, text):
        self.text = text
        t = text.split(";")[0].strip()
        parts = t.split(None, 1)
        self.mn = parts[0]
        rest = parts[1] if len(parts) > 1 else ""
        toks = [x.strip() for x in rest.split(",")] if rest else []
        self.mods = ""
        if toks:
            last = toks[-1].split(None, 1)
            if len(last) > 1 and not toks[-1].startswith("hwreg"):
                toks[-1] = last[0]
                self.mods = last[1]
        self.ops = toks
        mn = self.mn
        self.rd, self.wr = set(), set()
        self.passes = 0
        self.srcC, self.srcAB = set(), set()
        self.states = 1
        self.wide_store = False
        self.store_data = set()
        self.dpp = False
        self.trans = False
        self.lds_dma = False
        self.target = None
        R = [regs_of(o) for o in toks]
        if mn.startswith("v_mfma"):
            self.kind = "mfma"
            self.passes = 8 if "32x32" in mn else 4
            self.wr = R[0]
            self.srcAB = R[1] | R[2]
            self.srcC = R[3]
            self.rd = self.srcAB | self.srcC
        elif mn.startswith("v_"):
            self.kind = "valu"
            base = mn.replace("_e32", "").replace("_e64", "").replace("_dpp", "")
            self.trans = base in TRANS
            allm = self.mods + " " + " ".join(toks)
            self.dpp = ("row_" in allm) or ("quad_perm" in allm) or ("wave_" in allm)
            if base.startswith("v_cmp"):
                self.wr = R[0]
                for r in R[1:]:
                    self.rd |= r
            elif base.startswith("v_permlane") and base.endswith("swap_b32"):
                self.wr = R[0] | R[1]
                self.rd = R[0] | R[1]
            elif base in ("v_add_co_u32", "v_sub_co_u32"):
                self.wr = R[0] | R[1]
                for r in R[2:]:
                    self.rd |= r
            elif base in ("v_addc_co_u32",):
                self.wr = R[0] | R[1]
                for r in R[2:]:
                    self.rd |= r
            else:
                self.wr = R[0]
                for r in R[1:]:
                    self.rd |= r
                if base == "v_cndmask_b32" and len(toks) == 3:
                    self.rd |= {("x", "vcc")}
                if base in ("v_fmac_f32", "v_mac_f32", "v_pk_fmac_f16", "v_dot2c_f32_bf16", "v_writelane_b32"):
                    self.rd |= R[0]
                if self.dpp:
                    self.rd |= R[0]
        elif mn.startswith("buffer_") or mn.startswith("global_"):
            self.kind = "vmem"
            lds = re.search(r"\blds\b", self.mods) is not None
            if mn.startswith("buffer_load"):
                if lds:
                    self.lds_dma = True
                    for r in R:
                        self.rd |= r
                    self.rd |= {("x", "m0")}
                else:
                    self.wr = R[0]
                    for r in R[1:]:
                        self.rd |= r
            elif mn.startswith("buffer_store") or mn.startswith("buffer_atomic"):
                for r in R:
                    self.rd |= r
                self.store_data = R[0]
                self.wide_store = ("x3" in mn or "x4" in mn)
            elif mn.startswith("global_load"):
                self.wr = R[0]
                for r in R[1:]:
                    self.rd |= r
            elif mn.startswith("global_atomic") or mn.startswith("global_store"):
                for r in R:
                    self.rd |= r
            elif mn in ("buffer_wbl2", "buffer_inv"):
                pass
            else:
                raise ValueError("unhandled vmem " + text)
        elif mn.startswith("ds_"):
            self.kind = "ds"
            if mn.startswith("ds_read") or mn.startswith("ds_bpermute") or mn.startswith("ds_swizzle"):
                self.wr = R[0]
                for r in R[1:]:
                    self.rd |= r
            else:
                for r in R:
                    self.rd |= r
        elif mn == "s_nop":
            self.kind = "nop"
            self.states = int(toks[0], 0) + 1
        elif mn.startswith("s_cbranch") or mn == "s_branch":
            self.kind = "branch"
            self.target = toks[0]
        elif mn.startswith("s_"):
            self.kind = "salu"
            if mn.startswith("s_cmp") or mn in ("s_waitcnt", "s_barrier", "s_endpgm", "s_setprio", "s_sleep",
                                                "s_bitcmp1_b32", "s_bitcmp0_b32"):
                for r in R:
                    self.rd |= r
            else:
                if R:
                    self.wr = R[0]
                for r in R[1:]:
                    self.rd |= r
                if "saveexec" in mn:
                    self.wr |= {("x", "exec")}
        else:
            raise ValueError("unknown instruction " + text)


def need(p, c):
    n = 0
    vw = {r for r in p.wr if r[0] == "v"}
    if p.kind == "valu":
        if c.kind == "mfma" and (vw & c.rd):
            n = max(n, 2)
        if c.kind == "valu":
            if c.dpp and (vw & c.rd):
                n = max(n, 2)
            if c.mn.startswith("v_permlane") and (vw & c.rd):
                n = max(n, 2)
            if (c.mn.startswith("v_readlane") or c.mn.startswith("v_readfirstlane")) and (vw & c.rd):
                n = max(n, 1)
            if p.trans and not c.trans and (vw & c.rd):
                n = max(n, 1)
        sw = {r for r in p.wr if r[0] in ("s", "x")}
        if sw:
            if c.kind in ("valu", "mfma") and (sw & c.rd):
                n = max(n, 4 if c.mn.startswith(("v_readlane", "v_writelane")) else 2)
            if c.kind == "vmem" and (sw & c.rd):
                n = max(n, 5)
            if ("x", "exec") in sw:
                if c.kind == "mfma":
                    n = max(n, 4)
                if c.kind == "valu" and c.dpp:
                    n = max(n, 5)
                if c.kind == "valu" and c.mn.startswith(("v_readlane", "v_readfirstlane", "v_writelane", "v_permlane")):
                    n = max(n, 4)
    if p.kind == "mfma":
        big = 12 if p.passes == 8 else 8
        ovl = 10 if p.passes == 8 else 6
        if c.kind == "mfma":
            if vw & c.srcAB:
                n = max(n, big)
            if vw & c.srcC:
                if not (c.srcC == p.wr and c.passes == p.passes):
                    n = max(n, ovl)
            elif (vw & c.wr):
                n = max(n, big)
        elif c.kind in ("valu", "vmem", "ds"):
            if vw & (c.rd | c.wr):
                n = max(n, big)
        if c.kind == "valu" and (p.srcC & c.wr):
            n = max(n, 7 if p.passes == 8 else 3)
    if p.kind == "vmem" and p.wide_store:
        cw = {r for r in c.wr if r[0] == "v"}
        if cw & p.store_data:
            n = max(n, 2 if c.kind == "valu" else 1)
    if p.kind == "salu" and ("x", "m0") in p.wr and c.lds_dma:
        n = max(n, 1)
    return n


WINDOW = 24


class Asm:
    def __init__(self):
        self.items = []
        self.npad = 0

    def __call__(self, text):
        for line in text.strip().split("\n"):
            line = line.strip()
            if not line:
                continue
            if line.startswith(";"):
                self.items.append(("c", line))
            elif line.endswith(":"):
                self.items.append(("l", line[:-1]))
            else:
                self.emit(Ins(line))

    def raw(self, text):
        self.items.append(("c!", text))

    def comment(self, text):
        self.items.append(("c", "; " + text))

    def label(self, name):
        self.items.append(("l", name))

    def _prev(self):
        d = 0
        for kind, it in reversed(self.items):
            if kind != "i":
                if kind == "c!":
                    return
                continue
            if it.mn in ("s_endpgm", "s_branch"):
                return
            yield it, d
            d += it.states
            if d > WINDOW:
                return

    def emit(self, ins):
        pad = 0
        for p, d in self._prev():
            n = need(p, ins)
            if n > d:
                pad = max(pad, n - d)
        if pad:
            self.npad += pad
            while pad > 0:
                k = min(pad, 16)
                self.items.append(("i", Ins(f"s_nop {k - 1}")))
                pad -= k
        self.items.append(("i", ins))

    def check_branches(self):
        idx = {it: i for i, (k, it) in enumerate(self.items) if k == "l"}
        problems = []
        ins_only = self.items
        for i, (k, it) in enumerate(ins_only):
            if k != "i" or it.kind != "branch" or it.target not in idx:
                continue
            before = []
            d = 0
            j = i
            while j >= 0 and d <= WINDOW:
                kk, x = ins_only[j]
                if kk == "i":
                    if j != i and x.mn in ("s_endpgm", "s_branch"):
                        break
                    before.append((x, d))
                    d += x.states
                elif kk == "c!":
                    break
                j -= 1
            j = idx[it.target]
            d2 = 0
            while j < len(ins_only) and d2 <= WINDOW:
                kk, x = ins_only[j]
                if kk == "i":
                    for p, dp in before:
                        dist = dp + d2
                        if p is it:
                            continue
                        n = need(p, x)
                        if n > dist:
                            problems.append(f"branch {it.text}: {p.text}  ->  {x.text}: need {n} have {dist}")
                    d2 += x.states
                    if x.mn in ("s_endpgm", "s_branch"):
                        break
                j += 1
        return problems

    def text(self):
        out = []
        for k, it in self.items:
            if k == "i":
                out.append("    " + it.text)
            elif k == "l":
                out.append(it + ":")
            else:
                out.append(it)
        return "\n".join(out) + "\n"

    def count(self):
        return sum(1 for k, _ in self.items if k == "i")
```

```python
from asmlib import Asm, V, S

NAME = "recurrent_scan__compressed_kv_cla__mixer_s_mlp__prompt"

KA_X, KA_CKV, KA_WQ, KA_WUK, KA_WUV, KA_WO = 0, 8, 16, 24, 32, 40
KA_W1, KA_W2, KA_W3, KA_W4, KA_OUT, KA_DBG, KA_WS = 56, 64, 72, 80, 88, 96, 104

WS_XNF = 0x0
WS_XN2F = 0x200000
WS_X1F = 0x400000
WS_H3F = 0x600000
WS_WF = 0xC00000
SZ_WF = 2400 * 1024
WS_FLAG = 0xE80000
WS_KV = 0x1000000
WS_CTXF = 0x3000000
WS_SLAB = 0x4000000
SZ_SLAB = 0x800000
WS_SIZE = 0x10000000
import os as _os
WS_BASE = int(_os.environ.get("WS_BASE", "0"), 0)
WS_XNF += WS_BASE; WS_XN2F += WS_BASE; WS_X1F += WS_BASE; WS_H3F += WS_BASE
WS_WF += WS_BASE; WS_FLAG += WS_BASE; WS_KV += WS_BASE; WS_CTXF += WS_BASE; WS_SLAB += WS_BASE

SZ_X = 2097152
SZ_W = 4194304
SZ_W12 = 524288
SZ_W34 = 1409024


def srd(a, d, base, nbytes):
    a(f"s_mov_b32 s{d}, s{base}")
    a(f"s_mov_b32 s{d + 1}, s{base + 1}")
    a(f"s_mov_b32 s{d + 2}, {hex(nbytes)}")
    a(f"s_mov_b32 s{d + 3}, 0x00020000")


def wave_sum(a, v, sdst):
    for sh in (1, 2, 4, 8):
        a(f"v_add_f32_dpp v{v}, v{v}, v{v} row_shr:{sh} row_mask:0xf bank_mask:0xf bound_ctrl:0")
    a(f"v_add_f32_dpp v{v}, v{v}, v{v} row_bcast:15 row_mask:0xa bank_mask:0xf")
    a(f"v_add_f32_dpp v{v}, v{v}, v{v} row_bcast:31 row_mask:0xc bank_mask:0xf")
    a(f"v_readlane_b32 s{sdst}, v{v}, 63")


def rne1(a, v):
    a(f"v_cvt_pk_bf16_f32 v{v}, v{v}, v{v}")
    a(f"v_and_b32 v{v}, 0xffff0000, v{v}")


def unpack8(a, pk, x):
    for i in range(4):
        a(f"v_lshlrev_b32 v{x + 2 * i}, 16, v{pk + i}")
        a(f"v_and_b32 v{x + 2 * i + 1}, 0xffff0000, v{pk + i}")


def ln_row(a, x, t, pk, s0, s_eps, s_inv):
    a(f"v_add_f32 v{t}, v{x}, v{x + 1}")
    a(f"v_add_f32 v{t + 1}, v{x + 2}, v{x + 3}")
    a(f"v_add_f32 v{t + 2}, v{x + 4}, v{x + 5}")
    a(f"v_add_f32 v{t + 3}, v{x + 6}, v{x + 7}")
    a(f"v_add_f32 v{t}, v{t}, v{t + 1}")
    a(f"v_add_f32 v{t + 2}, v{t + 2}, v{t + 3}")
    a(f"v_add_f32 v{t}, v{t}, v{t + 2}")
    wave_sum(a, t, s0)
    a(f"v_mov_b32 v{t + 8}, s{s_inv}")
    a(f"v_mul_f32 v{t + 8}, s{s0}, v{t + 8}")
    for i in range(8):
        a(f"v_sub_f32 v{t + i}, v{x + i}, v{t + 8}")
    a(f"v_mul_f32 v{t + 9}, v{t}, v{t}")
    for i in range(1, 8):
        a(f"v_fmac_f32 v{t + 9}, v{t + i}, v{t + i}")
    wave_sum(a, t + 9, s0)
    a(f"v_mov_b32 v{t + 9}, s{s_inv}")
    a(f"v_mul_f32 v{t + 9}, s{s0}, v{t + 9}")
    rne1(a, t + 8)
    rne1(a, t + 9)
    a(f"v_add_f32 v{t + 9}, s{s_eps}, v{t + 9}")
    rne1(a, t + 9)
    a(f"v_sqrt_f32 v{t + 9}, v{t + 9}")
    rne1(a, t + 9)
    a(f"v_rcp_f32 v{t + 9}, v{t + 9}")
    for i in range(8):
        a(f"v_sub_f32 v{t + i}, v{x + i}, v{t + 8}")
    for i in range(4):
        a(f"v_cvt_pk_bf16_f32 v{pk + i}, v{t + 2 * i}, v{t + 2 * i + 1}")
    unpack8(a, pk, t)
    for i in range(8):
        a(f"v_mul_f32 v{t + i}, v{t + i}, v{t + 9}")
    for i in range(4):
        a(f"v_cvt_pk_bf16_f32 v{pk + i}, v{t + 2 * i}, v{t + 2 * i + 1}")


def kernel_begin(a, label):
    a.raw(f".globl {label}\n.p2align 8\n.type {label},@function")
    a.label(label)


def kernel_desc(label, vgpr=256, sgpr=102):
    return f""".amdhsa_kernel {label}
  .amdhsa_next_free_vgpr {vgpr}
  .amdhsa_next_free_sgpr {sgpr}
  .amdhsa_accum_offset {(vgpr + 3) // 4 * 4}
  .amdhsa_group_segment_fixed_size 0
  .amdhsa_kernarg_size 112
  .amdhsa_user_sgpr_count 2
  .amdhsa_user_sgpr_kernarg_segment_ptr 1
  .amdhsa_system_sgpr_workgroup_id_x 1
.end_amdhsa_kernel
"""


import os
PROF = int(os.environ.get("PROF", "0"))
PROF_WAVE = int(os.environ.get("PROF_WAVE", "0"))
sPROF = 78
WS_PROF = 0x8000000


def stamp(a, i):
    if not PROF:
        return
    if i == 0:
        a("s_memrealtime s[96:97]")
        a("s_waitcnt lgkmcnt(0)")
        a("s_mov_b32 s94, s96")
    a("s_memrealtime s[96:97]" if PROF == 2 else "s_memtime s[96:97]")
    a("s_waitcnt lgkmcnt(0)")
    a(f"s_mov_b32 s{sPROF + i}, s96")


def prof_dump(a, n, sID, sW, launch=0, va=2, vb=3):
    if not PROF:
        return
    lab = f"PROF_SKIP_{len(a.items)}"
    a(f"s_cmp_lg_u32 s{sW}, {PROF_WAVE}")
    a(f"s_cbranch_scc1 {lab}")
    a("s_memrealtime s[96:97]")
    a("s_waitcnt lgkmcnt(0)")
    a("s_mov_b32 s95, s96")
    a(f"s_load_dwordx2 s[96:97], s[0:1], {KA_WS}")
    a("s_waitcnt lgkmcnt(0)")
    a(f"s_mov_b32 s98, {hex(WS_SIZE)}")
    a("s_mov_b32 s99, 0x00020000")
    a(f"s_lshl_b32 s77, s{sID}, 6")
    a(f"s_add_u32 s77, s77, {WS_PROF + launch * 0x10000}")
    a(f"v_mov_b32 v{va}, 0")
    a(f"v_mov_b32 v{vb}, s94")
    a(f"buffer_store_dword v{vb}, v{va}, s[96:99], s77 offen")
    a(f"v_mov_b32 v{vb}, s95")
    a(f"buffer_store_dword v{vb}, v{va}, s[96:99], s77 offen offset:4")
    for i in range(1, n):
        a(f"s_sub_u32 s{sPROF + i}, s{sPROF + i}, s{sPROF}")
        a(f"v_mov_b32 v{vb}, s{sPROF + i}")
        a(f"buffer_store_dword v{vb}, v{va}, s[96:99], s77 offen offset:{4 * (i + 1)}")
    a("s_waitcnt vmcnt(0)")
    a.label(lab)

LAUNCH = [0]

FUSE = int(os.environ.get("FUSE", "0"))
sDBG = 100
sEV = 76
CNT_X, CNT_K, CNT_R = 0, 64, 192
POLLS = 100000
PSLEEP = int(os.environ.get("PSLEEP", "8"))
LDF = " sc1" if FUSE else ""


HW_MASK = 0x01FF3F70


def bump(a, sW, soff, va, vb, lab, once=False, val="1"):
    a(f"s_cmp_lg_u32 s{sW}, 0")
    a(f"s_cbranch_scc1 {lab}")
    if once:
        a(f"s_cmp_eq_i32 s{soff}, -1")
        a(f"s_cbranch_scc1 {lab}")
    a(f"v_mov_b32 v{va}, s{soff}")
    a(f"v_mov_b32 v{vb}, {val}")
    a("s_mov_b64 exec, 1")
    a(f"global_atomic_add v{va}, v{vb}, s[{sDBG}:{sDBG + 1}] sc1")
    a("s_mov_b64 exec, -1")
    if once:
        a(f"s_mov_b32 s{soff}, -1")
    a.label(lab)


def poll_load(va, vd):
    return f"global_load_dword v{vd}, v{va}, s[{sDBG}:{sDBG + 1}] sc1"


def poll_loop(a, va, vd, target, scnt, lab, first=True, mask=None):
    a(f"s_mov_b32 s{scnt}, {POLLS}")
    if not first:
        a(f"s_branch {lab}_C")
    a.label(lab)
    a(poll_load(va, vd))
    a("s_waitcnt vmcnt(0)")
    a.label(lab + "_C")
    if mask is not None:
        a(f"v_and_b32 v{vd}, {mask}, v{vd}")
    a(f"v_cmp_gt_u32 vcc, {target}, v{vd}")
    a(f"s_cbranch_vccz {lab}_D")
    a(f"s_sleep {PSLEEP}")
    a(f"s_sub_u32 s{scnt}, s{scnt}, 1")
    a(f"s_cmp_lg_u32 s{scnt}, 0")
    a(f"s_cbranch_scc1 {lab}")
    a.label(lab + "_D")


TOUCHV = int(os.environ.get("TOUCHV", "2"))
T64 = int(os.environ.get("T64", "0"))


def wo_touch(a, sID, sW, srank, s0, v0):
    if TOUCHV != 2:
        return
    a(f"s_load_dwordx2 s[{s0}:{s0 + 1}], s[0:1], {KA_WO}")
    a(f"s_load_dwordx2 s[{s0 + 2}:{s0 + 3}], s[0:1], {KA_W4}")
    r, t0, t1 = s0 + 4, s0 + 8, s0 + 9
    a(f"s_lshl_b32 s{t0}, s{srank}, 3")
    a(f"s_add_u32 s{t0}, s{t0}, s{sW}")
    a(f"s_mul_i32 s{t0}, s{t0}, 22528")
    a(f"s_and_b32 s{t1}, s{sID}, 3")
    a(f"v_and_b32 v{v0}, 63, v1")
    a(f"v_lshlrev_b32 v{v0}, 7, v{v0}")
    a("s_waitcnt lgkmcnt(0)")
    srd(a, r, s0, SZ_W)
    a(f"s_cmp_eq_u32 s{t1}, 3")
    a(f"s_cselect_b32 s{r}, s{s0 + 2}, s{r}")
    a(f"s_cselect_b32 s{r + 1}, s{s0 + 3}, s{r + 1}")
    a(f"s_cselect_b32 s{r + 2}, {hex(SZ_W34)}, s{r + 2}")
    a(f"s_cselect_b32 s{t1}, 0, s{t1}")
    a(f"s_mul_i32 s{t1}, s{t1}, {1408 * 1024}")
    a(f"s_add_u32 s{t0}, s{t0}, s{t1}")
    for i in range(3):
        a(f"buffer_load_dword v{v0 + 1}, v{v0}, s[{r}:{r + 3}], s{t0} offen")
        if T64:
            a(f"buffer_load_dword v{v0 + 1}, v{v0}, s[{r}:{r + 3}], s{t0} offen offset:64")
        if i < 2:
            a(f"s_add_u32 s{t0}, s{t0}, 8192")
```

```python
from asmlib import Asm, V, S

NAME = "recurrent_scan__compressed_kv_cla__mixer_s_mlp__prompt"

KA_X, KA_CKV, KA_WQ, KA_WUK, KA_WUV, KA_WO = 0, 8, 16, 24, 32, 40
KA_W1, KA_W2, KA_W3, KA_W4, KA_OUT, KA_DBG, KA_WS = 56, 64, 72, 80, 88, 96, 104

WS_XNF = 0x0
WS_XN2F = 0x200000
WS_X1F = 0x400000
WS_H3F = 0x600000
WS_WF = 0xC00000
SZ_WF = 2400 * 1024
WS_FLAG = 0xE80000
WS_KV = 0x1000000
WS_CTXF = 0x3000000
WS_SLAB = 0x4000000
SZ_SLAB = 0x800000
WS_SIZE = 0x10000000
import os as _os
WS_BASE = int(_os.environ.get("WS_BASE", "0"), 0)
WS_XNF += WS_BASE; WS_XN2F += WS_BASE; WS_X1F += WS_BASE; WS_H3F += WS_BASE
WS_WF += WS_BASE; WS_FLAG += WS_BASE; WS_KV += WS_BASE; WS_CTXF += WS_BASE; WS_SLAB += WS_BASE

SZ_X = 2097152
SZ_W = 4194304
SZ_W12 = 524288
SZ_W34 = 1409024


def srd(a, d, base, nbytes):
    a(f"s_mov_b32 s{d}, s{base}")
    a(f"s_mov_b32 s{d + 1}, s{base + 1}")
    a(f"s_mov_b32 s{d + 2}, {hex(nbytes)}")
    a(f"s_mov_b32 s{d + 3}, 0x00020000")


def wave_sum(a, v, sdst):
    for sh in (1, 2, 4, 8):
        a(f"v_add_f32_dpp v{v}, v{v}, v{v} row_shr:{sh} row_mask:0xf bank_mask:0xf bound_ctrl:0")
    a(f"v_add_f32_dpp v{v}, v{v}, v{v} row_bcast:15 row_mask:0xa bank_mask:0xf")
    a(f"v_add_f32_dpp v{v}, v{v}, v{v} row_bcast:31 row_mask:0xc bank_mask:0xf")
    a(f"v_readlane_b32 s{sdst}, v{v}, 63")


def rne1(a, v):
    a(f"v_cvt_pk_bf16_f32 v{v}, v{v}, v{v}")
    a(f"v_and_b32 v{v}, 0xffff0000, v{v}")


def unpack8(a, pk, x):
    for i in range(4):
        a(f"v_lshlrev_b32 v{x + 2 * i}, 16, v{pk + i}")
        a(f"v_and_b32 v{x + 2 * i + 1}, 0xffff0000, v{pk + i}")


def ln_row(a, x, t, pk, s0, s_eps, s_inv):
    a(f"v_add_f32 v{t}, v{x}, v{x + 1}")
    a(f"v_add_f32 v{t + 1}, v{x + 2}, v{x + 3}")
    a(f"v_add_f32 v{t + 2}, v{x + 4}, v{x + 5}")
    a(f"v_add_f32 v{t + 3}, v{x + 6}, v{x + 7}")
    a(f"v_add_f32 v{t}, v{t}, v{t + 1}")
    a(f"v_add_f32 v{t + 2}, v{t + 2}, v{t + 3}")
    a(f"v_add_f32 v{t}, v{t}, v{t + 2}")
    wave_sum(a, t, s0)
    a(f"v_mov_b32 v{t + 8}, s{s_inv}")
    a(f"v_mul_f32 v{t + 8}, s{s0}, v{t + 8}")
    for i in range(8):
        a(f"v_sub_f32 v{t + i}, v{x + i}, v{t + 8}")
    a(f"v_mul_f32 v{t + 9}, v{t}, v{t}")
    for i in range(1, 8):
        a(f"v_fmac_f32 v{t + 9}, v{t + i}, v{t + i}")
    wave_sum(a, t + 9, s0)
    a(f"v_mov_b32 v{t + 9}, s{s_inv}")
    a(f"v_mul_f32 v{t + 9}, s{s0}, v{t + 9}")
    rne1(a, t + 8)
    rne1(a, t + 9)
    a(f"v_add_f32 v{t + 9}, s{s_eps}, v{t + 9}")
    rne1(a, t + 9)
    a(f"v_sqrt_f32 v{t + 9}, v{t + 9}")
    rne1(a, t + 9)
    a(f"v_rcp_f32 v{t + 9}, v{t + 9}")
    for i in range(8):
        a(f"v_sub_f32 v{t + i}, v{x + i}, v{t + 8}")
    for i in range(4):
        a(f"v_cvt_pk_bf16_f32 v{pk + i}, v{t + 2 * i}, v{t + 2 * i + 1}")
    unpack8(a, pk, t)
    for i in range(8):
        a(f"v_mul_f32 v{t + i}, v{t + i}, v{t + 9}")
    for i in range(4):
        a(f"v_cvt_pk_bf16_f32 v{pk + i}, v{t + 2 * i}, v{t + 2 * i + 1}")


def kernel_begin(a, label):
    a.raw(f".globl {label}\n.p2align 8\n.type {label},@function")
    a.label(label)


def kernel_desc(label, vgpr=256, sgpr=102):
    return f""".amdhsa_kernel {label}
  .amdhsa_next_free_vgpr {vgpr}
  .amdhsa_next_free_sgpr {sgpr}
  .amdhsa_accum_offset {(vgpr + 3) // 4 * 4}
  .amdhsa_group_segment_fixed_size 0
  .amdhsa_kernarg_size 112
  .amdhsa_user_sgpr_count 2
  .amdhsa_user_sgpr_kernarg_segment_ptr 1
  .amdhsa_system_sgpr_workgroup_id_x 1
.end_amdhsa_kernel
"""


import os
PROF = int(os.environ.get("PROF", "0"))
PROF_WAVE = int(os.environ.get("PROF_WAVE", "0"))
sPROF = 78
WS_PROF = 0x8000000


def stamp(a, i):
    if not PROF:
        return
    if i == 0:
        a("s_memrealtime s[96:97]")
        a("s_waitcnt lgkmcnt(0)")
        a("s_mov_b32 s94, s96")
    a("s_memrealtime s[96:97]" if PROF == 2 else "s_memtime s[96:97]")
    a("s_waitcnt lgkmcnt(0)")
    a(f"s_mov_b32 s{sPROF + i}, s96")


def prof_dump(a, n, sID, sW, launch=0, va=2, vb=3):
    if not PROF:
        return
    lab = f"PROF_SKIP_{len(a.items)}"
    a(f"s_cmp_lg_u32 s{sW}, {PROF_WAVE}")
    a(f"s_cbranch_scc1 {lab}")
    a("s_memrealtime s[96:97]")
    a("s_waitcnt lgkmcnt(0)")
    a("s_mov_b32 s95, s96")
    a(f"s_load_dwordx2 s[96:97], s[0:1], {KA_WS}")
    a("s_waitcnt lgkmcnt(0)")
    a(f"s_mov_b32 s98, {hex(WS_SIZE)}")
    a("s_mov_b32 s99, 0x00020000")
    a(f"s_lshl_b32 s93, s{sID}, 6")
    a(f"s_add_u32 s93, s93, {WS_PROF + launch * 0x10000}")
    a(f"v_mov_b32 v{va}, 0")
    a(f"v_mov_b32 v{vb}, s94")
    a(f"buffer_store_dword v{vb}, v{va}, s[96:99], s93 offen")
    a(f"v_mov_b32 v{vb}, s95")
    a(f"buffer_store_dword v{vb}, v{va}, s[96:99], s93 offen offset:4")
    for i in range(1, n):
        a(f"s_sub_u32 s{sPROF + i}, s{sPROF + i}, s{sPROF}")
        a(f"v_mov_b32 v{vb}, s{sPROF + i}")
        a(f"buffer_store_dword v{vb}, v{va}, s[96:99], s93 offen offset:{4 * (i + 1)}")
    a("s_waitcnt vmcnt(0)")
    a.label(lab)

LAUNCH = [0]

FUSE = int(os.environ.get("FUSE", "0"))
sFB = 100
sEV = 76
sNON = 77
FLAGV = 8
WS_HF = 0xE90000 + WS_BASE
HF_X, HF_K, HF_R = 0, 16 * 128, 48 * 128
HF_W = 48 * 128
POLLS = 100000
PSLEEP = int(os.environ.get("PSLEEP", "4"))
LDF = " sc1" if FUSE else ""


def flag_base(a, sws):
    a(f"s_add_u32 s{sFB}, s{sws}, {hex(WS_HF)}")
    a(f"s_addc_u32 s{sFB + 1}, s{sws + 1}, 0")


def flag_store(a, sW, soff, va, vb, lab, once=False, val=None):
    a(f"s_cmp_lg_u32 s{sW}, 0")
    a(f"s_cbranch_scc1 {lab}")
    if once:
        a(f"s_cmp_eq_i32 s{soff}, -1")
        a(f"s_cbranch_scc1 {lab}")
    a(f"v_mov_b32 v{va}, s{soff}")
    a(f"v_mov_b32 v{vb}, s{sNON if val is None else val}")
    a("s_mov_b64 exec, 1")
    a(f"global_store_dword v{va}, v{vb}, s[{sFB}:{sFB + 1}] sc1")
    a("s_mov_b64 exec, -1")
    a.label(lab)
    if once:
        a(f"s_mov_b32 s{soff}, -1")


def poll_load(va, vd, n=1):
    if n == 4:
        return f"global_load_dwordx4 v[{vd}:{vd + 3}], v{va}, s[{sFB}:{sFB + 1}] sc1"
    return f"global_load_dword v{vd}, v{va}, s[{sFB}:{sFB + 1}] sc1"


def poll_check(a, vd, n=1):
    if n == 4:
        for i in range(4):
            a(f"v_xor_b32 v{vd + i}, s{sNON}, v{vd + i}")
        a(f"v_or3_b32 v{vd}, v{vd}, v{vd + 1}, v{vd + 2}")
        a(f"v_or_b32 v{vd}, v{vd}, v{vd + 3}")
        a(f"v_cmp_ne_u32 vcc, 0, v{vd}")
    else:
        a(f"v_cmp_ne_u32 vcc, s{sNON}, v{vd}")


def poll_loop(a, va, vd, scnt, lab, n=1):
    a(f"s_mov_b32 s{scnt}, {POLLS}")
    a.label(lab)
    a(poll_load(va, vd, n))
    a("s_waitcnt vmcnt(0)")
    poll_check(a, vd, n)
    a(f"s_cbranch_vccz {lab}_D")
    a(f"s_sleep {PSLEEP}")
    a(f"s_sub_u32 s{scnt}, s{scnt}, 1")
    a(f"s_cmp_lg_u32 s{scnt}, 0")
    a(f"s_cbranch_scc1 {lab}")
    a.label(lab + "_D")


TOUCHV = int(os.environ.get("TOUCHV", "2"))
T64 = int(os.environ.get("T64", "0"))


def wo_touch(a, sID, sW, srank, s0, v0):
    if TOUCHV != 2:
        return
    a(f"s_load_dwordx2 s[{s0}:{s0 + 1}], s[0:1], {KA_WO}")
    a(f"s_load_dwordx2 s[{s0 + 2}:{s0 + 3}], s[0:1], {KA_W4}")
    r, t0, t1 = s0 + 4, s0 + 8, s0 + 9
    a(f"s_lshl_b32 s{t0}, s{srank}, 3")
    a(f"s_add_u32 s{t0}, s{t0}, s{sW}")
    a(f"s_mul_i32 s{t0}, s{t0}, 22528")
    a(f"s_and_b32 s{t1}, s{sID}, 3")
    a(f"v_and_b32 v{v0}, 63, v1")
    a(f"v_lshlrev_b32 v{v0}, 7, v{v0}")
    a("s_waitcnt lgkmcnt(0)")
    srd(a, r, s0, SZ_W)
    a(f"s_cmp_eq_u32 s{t1}, 3")
    a(f"s_cselect_b32 s{r}, s{s0 + 2}, s{r}")
    a(f"s_cselect_b32 s{r + 1}, s{s0 + 3}, s{r + 1}")
    a(f"s_cselect_b32 s{r + 2}, {hex(SZ_W34)}, s{r + 2}")
    a(f"s_cselect_b32 s{t1}, 0, s{t1}")
    a(f"s_mul_i32 s{t1}, s{t1}, {1408 * 1024}")
    a(f"s_add_u32 s{t0}, s{t0}, s{t1}")
    for i in range(3):
        a(f"buffer_load_dword v{v0 + 1}, v{v0}, s[{r}:{r + 3}], s{t0} offen")
        if T64:
            a(f"buffer_load_dword v{v0 + 1}, v{v0}, s[{r}:{r + 3}], s{t0} offen offset:64")
        if i < 2:
            a(f"s_add_u32 s{t0}, s{t0}, 8192")
```

```python
from asmlib import Asm, V, S

NAME = "recurrent_scan__compressed_kv_cla__mixer_s_mlp__prompt"

KA_X, KA_CKV, KA_WQ, KA_WUK, KA_WUV, KA_WO = 0, 8, 16, 24, 32, 40
KA_W1, KA_W2, KA_W3, KA_W4, KA_OUT, KA_DBG, KA_WS = 56, 64, 72, 80, 88, 96, 104

WS_XNF = 0x0
WS_XN2F = 0x200000
WS_X1F = 0x400000
WS_H3F = 0x600000
WS_WF = 0xC00000
SZ_WF = 2400 * 1024
WS_FLAG = 0xE80000
WS_KV = 0x1000000
WS_CTXF = 0x3000000
WS_SLAB = 0x4000000
SZ_SLAB = 0x800000
WS_SIZE = 0x10000000
import os as _os
WS_BASE = int(_os.environ.get("WS_BASE", "0"), 0)
WS_XNF += WS_BASE; WS_XN2F += WS_BASE; WS_X1F += WS_BASE; WS_H3F += WS_BASE
WS_WF += WS_BASE; WS_FLAG += WS_BASE; WS_KV += WS_BASE; WS_CTXF += WS_BASE; WS_SLAB += WS_BASE

SZ_X = 2097152
SZ_W = 4194304
SZ_W12 = 524288
SZ_W34 = 1409024


def srd(a, d, base, nbytes):
    a(f"s_mov_b32 s{d}, s{base}")
    a(f"s_mov_b32 s{d + 1}, s{base + 1}")
    a(f"s_mov_b32 s{d + 2}, {hex(nbytes)}")
    a(f"s_mov_b32 s{d + 3}, 0x00020000")


def wave_sum(a, v, sdst):
    for sh in (1, 2, 4, 8):
        a(f"v_add_f32_dpp v{v}, v{v}, v{v} row_shr:{sh} row_mask:0xf bank_mask:0xf bound_ctrl:0")
    a(f"v_add_f32_dpp v{v}, v{v}, v{v} row_bcast:15 row_mask:0xa bank_mask:0xf")
    a(f"v_add_f32_dpp v{v}, v{v}, v{v} row_bcast:31 row_mask:0xc bank_mask:0xf")
    a(f"v_readlane_b32 s{sdst}, v{v}, 63")


def rne1(a, v):
    a(f"v_cvt_pk_bf16_f32 v{v}, v{v}, v{v}")
    a(f"v_and_b32 v{v}, 0xffff0000, v{v}")


def unpack8(a, pk, x):
    for i in range(4):
        a(f"v_lshlrev_b32 v{x + 2 * i}, 16, v{pk + i}")
        a(f"v_and_b32 v{x + 2 * i + 1}, 0xffff0000, v{pk + i}")


def ln_row(a, x, t, pk, s0, s_eps, s_inv):
    a(f"v_add_f32 v{t}, v{x}, v{x + 1}")
    a(f"v_add_f32 v{t + 1}, v{x + 2}, v{x + 3}")
    a(f"v_add_f32 v{t + 2}, v{x + 4}, v{x + 5}")
    a(f"v_add_f32 v{t + 3}, v{x + 6}, v{x + 7}")
    a(f"v_add_f32 v{t}, v{t}, v{t + 1}")
    a(f"v_add_f32 v{t + 2}, v{t + 2}, v{t + 3}")
    a(f"v_add_f32 v{t}, v{t}, v{t + 2}")
    wave_sum(a, t, s0)
    a(f"v_mov_b32 v{t + 8}, s{s_inv}")
    a(f"v_mul_f32 v{t + 8}, s{s0}, v{t + 8}")
    for i in range(8):
        a(f"v_sub_f32 v{t + i}, v{x + i}, v{t + 8}")
    a(f"v_mul_f32 v{t + 9}, v{t}, v{t}")
    for i in range(1, 8):
        a(f"v_fmac_f32 v{t + 9}, v{t + i}, v{t + i}")
    wave_sum(a, t + 9, s0)
    a(f"v_mov_b32 v{t + 9}, s{s_inv}")
    a(f"v_mul_f32 v{t + 9}, s{s0}, v{t + 9}")
    rne1(a, t + 8)
    rne1(a, t + 9)
    a(f"v_add_f32 v{t + 9}, s{s_eps}, v{t + 9}")
    rne1(a, t + 9)
    a(f"v_sqrt_f32 v{t + 9}, v{t + 9}")
    rne1(a, t + 9)
    a(f"v_rcp_f32 v{t + 9}, v{t + 9}")
    for i in range(8):
        a(f"v_sub_f32 v{t + i}, v{x + i}, v{t + 8}")
    for i in range(4):
        a(f"v_cvt_pk_bf16_f32 v{pk + i}, v{t + 2 * i}, v{t + 2 * i + 1}")
    unpack8(a, pk, t)
    for i in range(8):
        a(f"v_mul_f32 v{t + i}, v{t + i}, v{t + 9}")
    for i in range(4):
        a(f"v_cvt_pk_bf16_f32 v{pk + i}, v{t + 2 * i}, v{t + 2 * i + 1}")


def kernel_begin(a, label):
    a.raw(f".globl {label}\n.p2align 8\n.type {label},@function")
    a.label(label)


def kernel_desc(label, vgpr=256, sgpr=102):
    return f""".amdhsa_kernel {label}
  .amdhsa_next_free_vgpr {vgpr}
  .amdhsa_next_free_sgpr {sgpr}
  .amdhsa_accum_offset {(vgpr + 3) // 4 * 4}
  .amdhsa_group_segment_fixed_size 0
  .amdhsa_kernarg_size 112
  .amdhsa_user_sgpr_count 2
  .amdhsa_user_sgpr_kernarg_segment_ptr 1
  .amdhsa_system_sgpr_workgroup_id_x 1
.end_amdhsa_kernel
"""


import os
PROF = int(os.environ.get("PROF", "0"))
PROF_WAVE = int(os.environ.get("PROF_WAVE", "0"))
sPROF = 78
WS_PROF = 0x8000000


def stamp(a, i):
    if not PROF:
        return
    if i == 0:
        a("s_memrealtime s[96:97]")
        a("s_waitcnt lgkmcnt(0)")
        a("s_mov_b32 s94, s96")
    a("s_memrealtime s[96:97]" if PROF == 2 else "s_memtime s[96:97]")
    a("s_waitcnt lgkmcnt(0)")
    a(f"s_mov_b32 s{sPROF + i}, s96")


def prof_dump(a, n, sID, sW, launch=0, va=2, vb=3):
    if not PROF:
        return
    lab = f"PROF_SKIP_{len(a.items)}"
    a(f"s_cmp_lg_u32 s{sW}, {PROF_WAVE}")
    a(f"s_cbranch_scc1 {lab}")
    a("s_memrealtime s[96:97]")
    a("s_waitcnt lgkmcnt(0)")
    a("s_mov_b32 s95, s96")
    a(f"s_load_dwordx2 s[96:97], s[0:1], {KA_WS}")
    a("s_waitcnt lgkmcnt(0)")
    a(f"s_mov_b32 s98, {hex(WS_SIZE)}")
    a("s_mov_b32 s99, 0x00020000")
    a(f"s_lshl_b32 s93, s{sID}, 6")
    a(f"s_add_u32 s93, s93, {WS_PROF + launch * 0x10000}")
    a(f"v_mov_b32 v{va}, 0")
    a(f"v_mov_b32 v{vb}, s94")
    a(f"buffer_store_dword v{vb}, v{va}, s[96:99], s93 offen")
    a(f"v_mov_b32 v{vb}, s95")
    a(f"buffer_store_dword v{vb}, v{va}, s[96:99], s93 offen offset:4")
    for i in range(1, n):
        a(f"s_sub_u32 s{sPROF + i}, s{sPROF + i}, s{sPROF}")
        a(f"v_mov_b32 v{vb}, s{sPROF + i}")
        a(f"buffer_store_dword v{vb}, v{va}, s[96:99], s93 offen offset:{4 * (i + 1)}")
    a("s_waitcnt vmcnt(0)")
    a.label(lab)

LAUNCH = [0]

FUSE = int(os.environ.get("FUSE", "0"))
sFB = 100
sEV = 76
sNON = 77
FLAGV = 8
WS_HF = 0xE90000 + WS_BASE
HF_X, HF_K, HF_R = 0, 16 * 128, 48 * 128
FUSE3 = int(os.environ.get("FUSE3", "0")) if FUSE else 0
TILEB = 98304
HF_C = 64 * 128
HF_B = 80 * 128
HF_W = 48 * 128
POLLS = 100000
PSLEEP = int(os.environ.get("PSLEEP", "4"))
LDF = " sc1" if FUSE else ""


def flag_base(a, sws):
    a(f"s_add_u32 s{sFB}, s{sws}, {hex(WS_HF)}")
    a(f"s_addc_u32 s{sFB + 1}, s{sws + 1}, 0")


def flag_store(a, sW, soff, va, vb, lab, once=False, val=None):
    a(f"s_cmp_lg_u32 s{sW}, 0")
    a(f"s_cbranch_scc1 {lab}")
    if once:
        a(f"s_cmp_eq_i32 s{soff}, -1")
        a(f"s_cbranch_scc1 {lab}")
    a(f"v_mov_b32 v{va}, s{soff}")
    a(f"v_mov_b32 v{vb}, s{sNON if val is None else val}")
    a("s_mov_b64 exec, 1")
    a(f"global_store_dword v{va}, v{vb}, s[{sFB}:{sFB + 1}] sc1")
    a("s_mov_b64 exec, -1")
    a.label(lab)
    if once:
        a(f"s_mov_b32 s{soff}, -1")


def flag_pair(a, sW, lab):
    a(f"s_cmp_lg_u32 s{sW}, 0")
    a(f"s_cbranch_scc1 {lab}")
    a(f"v_mov_b32 v9, s{sNON}")
    a("s_mov_b64 exec, 3")
    a(f"global_store_dword v8, v9, s[{sFB}:{sFB + 1}] sc1")
    a("s_mov_b64 exec, -1")
    a.label(lab)


def poll_load(va, vd, n=1):
    if n == 4:
        return f"global_load_dwordx4 v[{vd}:{vd + 3}], v{va}, s[{sFB}:{sFB + 1}] sc1"
    return f"global_load_dword v{vd}, v{va}, s[{sFB}:{sFB + 1}] sc1"


def poll_check(a, vd, n=1):
    if n == 4:
        for i in range(4):
            a(f"v_xor_b32 v{vd + i}, s{sNON}, v{vd + i}")
        a(f"v_or3_b32 v{vd}, v{vd}, v{vd + 1}, v{vd + 2}")
        a(f"v_or_b32 v{vd}, v{vd}, v{vd + 3}")
        a(f"v_cmp_ne_u32 vcc, 0, v{vd}")
    else:
        a(f"v_cmp_ne_u32 vcc, s{sNON}, v{vd}")


def poll_loop(a, va, vd, scnt, lab, n=1):
    a(f"s_mov_b32 s{scnt}, {POLLS}")
    a.label(lab)
    a(poll_load(va, vd, n))
    a("s_waitcnt vmcnt(0)")
    poll_check(a, vd, n)
    a(f"s_cbranch_vccz {lab}_D")
    a(f"s_sleep {PSLEEP}")
    a(f"s_sub_u32 s{scnt}, s{scnt}, 1")
    a(f"s_cmp_lg_u32 s{scnt}, 0")
    a(f"s_cbranch_scc1 {lab}")
    a.label(lab + "_D")


TOUCHV = int(os.environ.get("TOUCHV", "2"))
T64 = int(os.environ.get("T64", "0"))


def wo_touch(a, sID, sW, srank, s0, v0):
    if TOUCHV != 2:
        return
    a(f"s_load_dwordx2 s[{s0}:{s0 + 1}], s[0:1], {KA_WO}")
    a(f"s_load_dwordx2 s[{s0 + 2}:{s0 + 3}], s[0:1], {KA_W4}")
    r, t0, t1 = s0 + 4, s0 + 8, s0 + 9
    a(f"s_lshl_b32 s{t0}, s{srank}, 3")
    a(f"s_add_u32 s{t0}, s{t0}, s{sW}")
    a(f"s_mul_i32 s{t0}, s{t0}, 22528")
    a(f"s_and_b32 s{t1}, s{sID}, 3")
    a(f"v_and_b32 v{v0}, 63, v1")
    a(f"v_lshlrev_b32 v{v0}, 7, v{v0}")
    a("s_waitcnt lgkmcnt(0)")
    srd(a, r, s0, SZ_W)
    a(f"s_cmp_eq_u32 s{t1}, 3")
    a(f"s_cselect_b32 s{r}, s{s0 + 2}, s{r}")
    a(f"s_cselect_b32 s{r + 1}, s{s0 + 3}, s{r + 1}")
    a(f"s_cselect_b32 s{r + 2}, {hex(SZ_W34)}, s{r + 2}")
    a(f"s_cselect_b32 s{t1}, 0, s{t1}")
    a(f"s_mul_i32 s{t1}, s{t1}, {1408 * 1024}")
    a(f"s_add_u32 s{t0}, s{t0}, s{t1}")
    for i in range(3):
        a(f"buffer_load_dword v{v0 + 1}, v{v0}, s[{r}:{r + 3}], s{t0} offen")
        if T64:
            a(f"buffer_load_dword v{v0 + 1}, v{v0}, s[{r}:{r + 3}], s{t0} offen offset:64")
        if i < 2:
            a(f"s_add_u32 s{t0}, s{t0}, 8192")
```

```python
from asmlib import Asm, V, S

NAME = "recurrent_scan__compressed_kv_cla__mixer_s_mlp__prompt"

KA_X, KA_CKV, KA_WQ, KA_WUK, KA_WUV, KA_WO = 0, 8, 16, 24, 32, 40
KA_W1, KA_W2, KA_W3, KA_W4, KA_OUT, KA_DBG, KA_WS = 56, 64, 72, 80, 88, 96, 104

WS_XNF = 0x0
WS_XN2F = 0x200000
WS_X1F = 0x400000
WS_H3F = 0x600000
WS_WF = 0xC00000
SZ_WF = 2400 * 1024
WS_FLAG = 0xE80000
WS_KV = 0x1000000
WS_CTXF = 0x3000000
WS_SLAB = 0x4000000
SZ_SLAB = 0x800000
WS_SIZE = 0x10000000
import os as _os
WS_BASE = int(_os.environ.get("WS_BASE", "0"), 0)
WS_XNF += WS_BASE; WS_XN2F += WS_BASE; WS_X1F += WS_BASE; WS_H3F += WS_BASE
WS_WF += WS_BASE; WS_FLAG += WS_BASE; WS_KV += WS_BASE; WS_CTXF += WS_BASE; WS_SLAB += WS_BASE

SZ_X = 2097152
SZ_W = 4194304
SZ_W12 = 524288
SZ_W34 = 1409024


def srd(a, d, base, nbytes):
    a(f"s_mov_b32 s{d}, s{base}")
    a(f"s_mov_b32 s{d + 1}, s{base + 1}")
    a(f"s_mov_b32 s{d + 2}, {hex(nbytes)}")
    a(f"s_mov_b32 s{d + 3}, 0x00020000")


def wave_sum(a, v, sdst):
    for sh in (1, 2, 4, 8):
        a(f"v_add_f32_dpp v{v}, v{v}, v{v} row_shr:{sh} row_mask:0xf bank_mask:0xf bound_ctrl:0")
    a(f"v_add_f32_dpp v{v}, v{v}, v{v} row_bcast:15 row_mask:0xa bank_mask:0xf")
    a(f"v_add_f32_dpp v{v}, v{v}, v{v} row_bcast:31 row_mask:0xc bank_mask:0xf")
    a(f"v_readlane_b32 s{sdst}, v{v}, 63")


def rne1(a, v):
    a(f"v_cvt_pk_bf16_f32 v{v}, v{v}, v{v}")
    a(f"v_and_b32 v{v}, 0xffff0000, v{v}")


def unpack8(a, pk, x):
    for i in range(4):
        a(f"v_lshlrev_b32 v{x + 2 * i}, 16, v{pk + i}")
        a(f"v_and_b32 v{x + 2 * i + 1}, 0xffff0000, v{pk + i}")


def ln_row(a, x, t, pk, s0, s_eps, s_inv):
    a(f"v_add_f32 v{t}, v{x}, v{x + 1}")
    a(f"v_add_f32 v{t + 1}, v{x + 2}, v{x + 3}")
    a(f"v_add_f32 v{t + 2}, v{x + 4}, v{x + 5}")
    a(f"v_add_f32 v{t + 3}, v{x + 6}, v{x + 7}")
    a(f"v_add_f32 v{t}, v{t}, v{t + 1}")
    a(f"v_add_f32 v{t + 2}, v{t + 2}, v{t + 3}")
    a(f"v_add_f32 v{t}, v{t}, v{t + 2}")
    wave_sum(a, t, s0)
    a(f"v_mov_b32 v{t + 8}, s{s_inv}")
    a(f"v_mul_f32 v{t + 8}, s{s0}, v{t + 8}")
    for i in range(8):
        a(f"v_sub_f32 v{t + i}, v{x + i}, v{t + 8}")
    a(f"v_mul_f32 v{t + 9}, v{t}, v{t}")
    for i in range(1, 8):
        a(f"v_fmac_f32 v{t + 9}, v{t + i}, v{t + i}")
    wave_sum(a, t + 9, s0)
    a(f"v_mov_b32 v{t + 9}, s{s_inv}")
    a(f"v_mul_f32 v{t + 9}, s{s0}, v{t + 9}")
    rne1(a, t + 8)
    rne1(a, t + 9)
    a(f"v_add_f32 v{t + 9}, s{s_eps}, v{t + 9}")
    rne1(a, t + 9)
    a(f"v_sqrt_f32 v{t + 9}, v{t + 9}")
    rne1(a, t + 9)
    a(f"v_rcp_f32 v{t + 9}, v{t + 9}")
    for i in range(8):
        a(f"v_sub_f32 v{t + i}, v{x + i}, v{t + 8}")
    for i in range(4):
        a(f"v_cvt_pk_bf16_f32 v{pk + i}, v{t + 2 * i}, v{t + 2 * i + 1}")
    unpack8(a, pk, t)
    for i in range(8):
        a(f"v_mul_f32 v{t + i}, v{t + i}, v{t + 9}")
    for i in range(4):
        a(f"v_cvt_pk_bf16_f32 v{pk + i}, v{t + 2 * i}, v{t + 2 * i + 1}")


def kernel_begin(a, label):
    a.raw(f".globl {label}\n.p2align 8\n.type {label},@function")
    a.label(label)


def kernel_desc(label, vgpr=256, sgpr=102):
    return f""".amdhsa_kernel {label}
  .amdhsa_next_free_vgpr {vgpr}
  .amdhsa_next_free_sgpr {sgpr}
  .amdhsa_accum_offset {(vgpr + 3) // 4 * 4}
  .amdhsa_group_segment_fixed_size 0
  .amdhsa_kernarg_size 112
  .amdhsa_user_sgpr_count 2
  .amdhsa_user_sgpr_kernarg_segment_ptr 1
  .amdhsa_system_sgpr_workgroup_id_x 1
.end_amdhsa_kernel
"""


import os
PROF = int(os.environ.get("PROF", "0"))
PROF_WAVE = int(os.environ.get("PROF_WAVE", "0"))
sPROF = 78
WS_PROF = 0x8000000


def stamp(a, i):
    if not PROF:
        return
    if i == 0:
        a("s_memrealtime s[96:97]")
        a("s_waitcnt lgkmcnt(0)")
        a("s_mov_b32 s94, s96")
    a("s_memrealtime s[96:97]" if PROF == 2 else "s_memtime s[96:97]")
    a("s_waitcnt lgkmcnt(0)")
    a(f"s_mov_b32 s{sPROF + i}, s96")


def prof_dump(a, n, sID, sW, launch=0, va=2, vb=3):
    if not PROF:
        return
    lab = f"PROF_SKIP_{len(a.items)}"
    a(f"s_cmp_lg_u32 s{sW}, {PROF_WAVE}")
    a(f"s_cbranch_scc1 {lab}")
    a("s_memrealtime s[96:97]")
    a("s_waitcnt lgkmcnt(0)")
    a("s_mov_b32 s95, s96")
    a(f"s_load_dwordx2 s[96:97], s[0:1], {KA_WS}")
    a("s_waitcnt lgkmcnt(0)")
    a(f"s_mov_b32 s98, {hex(WS_SIZE)}")
    a("s_mov_b32 s99, 0x00020000")
    a(f"s_lshl_b32 s93, s{sID}, 6")
    a(f"s_add_u32 s93, s93, {WS_PROF + launch * 0x10000}")
    a(f"v_mov_b32 v{va}, 0")
    a(f"v_mov_b32 v{vb}, s94")
    a(f"buffer_store_dword v{vb}, v{va}, s[96:99], s93 offen")
    a(f"v_mov_b32 v{vb}, s95")
    a(f"buffer_store_dword v{vb}, v{va}, s[96:99], s93 offen offset:4")
    for i in range(1, n):
        a(f"s_sub_u32 s{sPROF + i}, s{sPROF + i}, s{sPROF}")
        a(f"v_mov_b32 v{vb}, s{sPROF + i}")
        a(f"buffer_store_dword v{vb}, v{va}, s[96:99], s93 offen offset:{4 * (i + 1)}")
    if not os.environ.get("FUSE3"):
        a("s_waitcnt vmcnt(0)")
    a.label(lab)

LAUNCH = [0]

FUSE = int(os.environ.get("FUSE", "0"))
sFB = 100
sEV = 76
sNON = 77
FLAGV = 8
WS_HF = 0xE90000 + WS_BASE
HF_X, HF_K, HF_R = 0, 16 * 128, 48 * 128
FUSE3 = int(os.environ.get("FUSE3", "0")) if FUSE else 0
TILEB = 98304
HF_C = 64 * 128
HF_B = 80 * 128
HF_W = 48 * 128
POLLS = 100000
PSLEEP = int(os.environ.get("PSLEEP", "4"))
LDF = " sc1" if FUSE else ""


def flag_base(a, sws):
    a(f"s_add_u32 s{sFB}, s{sws}, {hex(WS_HF)}")
    a(f"s_addc_u32 s{sFB + 1}, s{sws + 1}, 0")


def flag_store(a, sW, soff, va, vb, lab, once=False, val=None):
    a(f"s_cmp_lg_u32 s{sW}, 0")
    a(f"s_cbranch_scc1 {lab}")
    if once:
        a(f"s_cmp_eq_i32 s{soff}, -1")
        a(f"s_cbranch_scc1 {lab}")
    a(f"v_mov_b32 v{va}, s{soff}")
    a(f"v_mov_b32 v{vb}, s{sNON if val is None else val}")
    a("s_mov_b64 exec, 1")
    a(f"global_store_dword v{va}, v{vb}, s[{sFB}:{sFB + 1}] sc1")
    a("s_mov_b64 exec, -1")
    a.label(lab)
    if once:
        a(f"s_mov_b32 s{soff}, -1")


def flag_pair(a, sW, lab):
    a(f"s_cmp_lg_u32 s{sW}, 0")
    a(f"s_cbranch_scc1 {lab}")
    a(f"v_mov_b32 v9, s{sNON}")
    a("s_mov_b64 exec, 3")
    a(f"global_store_dword v8, v9, s[{sFB}:{sFB + 1}] sc1")
    a("s_mov_b64 exec, -1")
    a.label(lab)


def poll_load(va, vd, n=1):
    if n == 4:
        return f"global_load_dwordx4 v[{vd}:{vd + 3}], v{va}, s[{sFB}:{sFB + 1}] sc1"
    return f"global_load_dword v{vd}, v{va}, s[{sFB}:{sFB + 1}] sc1"


def poll_check(a, vd, n=1):
    if n == 4:
        for i in range(4):
            a(f"v_xor_b32 v{vd + i}, s{sNON}, v{vd + i}")
        a(f"v_or3_b32 v{vd}, v{vd}, v{vd + 1}, v{vd + 2}")
        a(f"v_or_b32 v{vd}, v{vd}, v{vd + 3}")
        a(f"v_cmp_ne_u32 vcc, 0, v{vd}")
    else:
        a(f"v_cmp_ne_u32 vcc, s{sNON}, v{vd}")


def poll_loop(a, va, vd, scnt, lab, n=1):
    a(f"s_mov_b32 s{scnt}, {POLLS}")
    a.label(lab)
    a(poll_load(va, vd, n))
    a("s_waitcnt vmcnt(0)")
    poll_check(a, vd, n)
    a(f"s_cbranch_vccz {lab}_D")
    a(f"s_sleep {PSLEEP}")
    a(f"s_sub_u32 s{scnt}, s{scnt}, 1")
    a(f"s_cmp_lg_u32 s{scnt}, 0")
    a(f"s_cbranch_scc1 {lab}")
    a.label(lab + "_D")


TOUCHV = int(os.environ.get("TOUCHV", "2"))
LATEF = int(os.environ.get("LATEF", "0"))
sPEND = 72
WOFINE = int(os.environ.get("WOFINE", "0"))
T64 = int(os.environ.get("T64", "0"))


def wo_touch(a, sID, sW, srank, s0, v0, fine=False, part=3, vd=None, tmp=None):
    if TOUCHV != 2 or os.environ.get("NOWO"):
        return
    vd = v0 + 1 if vd is None else vd
    if part & 1:
        a(f"s_load_dwordx2 s[{s0}:{s0 + 1}], s[0:1], {KA_WO}")
        a(f"s_load_dwordx2 s[{s0 + 2}:{s0 + 3}], s[0:1], {KA_W4}")
    if not part & 2:
        return
    r, t0, t1 = s0 + 4, s0 + 8, s0 + 9
    if tmp:
        t0, t1 = tmp
    a(f"s_lshl_b32 s{t0}, s{srank}, 3")
    a(f"s_add_u32 s{t0}, s{t0}, s{sW}")
    a(f"s_mul_i32 s{t0}, s{t0}, {5632 if fine else 22528}")
    a(f"s_and_b32 s{t1}, s{sID}, 3")
    a(f"v_and_b32 v{v0}, 63, v1")
    a(f"v_lshlrev_b32 v{v0}, 7, v{v0}")
    if part & 1:
        a("s_waitcnt lgkmcnt(0)")
    srd(a, r, s0, SZ_W)
    a(f"s_cmp_eq_u32 s{t1}, 3")
    a(f"s_cselect_b32 s{r}, s{s0 + 2}, s{r}")
    a(f"s_cselect_b32 s{r + 1}, s{s0 + 3}, s{r + 1}")
    a(f"s_cselect_b32 s{r + 2}, {hex(SZ_W34)}, s{r + 2}")
    a(f"s_cselect_b32 s{t1}, 0, s{t1}")
    a(f"s_mul_i32 s{t1}, s{t1}, {1408 * 1024}")
    a(f"s_add_u32 s{t0}, s{t0}, s{t1}")
    if fine:
        a("s_mov_b32 exec_hi, 0xfff")
        a(f"buffer_load_dword v{vd}, v{v0}, s[{r}:{r + 3}], s{t0} offen")
        a("s_mov_b32 exec_hi, -1")
        return
    for i in range(3):
        a(f"buffer_load_dword v{vd}, v{v0}, s[{r}:{r + 3}], s{t0} offen")
        if T64:
            a(f"buffer_load_dword v{vd}, v{v0}, s[{r}:{r + 3}], s{t0} offen offset:64")
        if i < 2:
            a(f"s_add_u32 s{t0}, s{t0}, 8192")
```

```python
from asmlib import Asm, V, S

NAME = "recurrent_scan__compressed_kv_cla__mixer_s_mlp__prompt"

KA_X, KA_CKV, KA_WQ, KA_WUK, KA_WUV, KA_WO = 0, 8, 16, 24, 32, 40
KA_W1, KA_W2, KA_W3, KA_W4, KA_OUT, KA_DBG, KA_WS = 56, 64, 72, 80, 88, 96, 104

WS_XNF = 0x0
WS_XN2F = 0x200000
WS_X1F = 0x400000
WS_H3F = 0x600000
WS_WF = 0xC00000
SZ_WF = 2400 * 1024
WS_FLAG = 0xE80000
WS_KV = 0x1000000
WS_CTXF = 0x3000000
WS_SLAB = 0x4000000
SZ_SLAB = 0x800000
WS_SIZE = 0x10000000
import os as _os
WS_BASE = int(_os.environ.get("WS_BASE", "0"), 0)
WS_XNF += WS_BASE; WS_XN2F += WS_BASE; WS_X1F += WS_BASE; WS_H3F += WS_BASE
WS_WF += WS_BASE; WS_FLAG += WS_BASE; WS_KV += WS_BASE; WS_CTXF += WS_BASE; WS_SLAB += WS_BASE

SZ_X = 2097152
SZ_W = 4194304
SZ_W12 = 524288
SZ_W34 = 1409024


def srd(a, d, base, nbytes):
    a(f"s_mov_b32 s{d}, s{base}")
    a(f"s_mov_b32 s{d + 1}, s{base + 1}")
    a(f"s_mov_b32 s{d + 2}, {hex(nbytes)}")
    a(f"s_mov_b32 s{d + 3}, 0x00020000")


def wave_sum(a, v, sdst):
    for sh in (1, 2, 4, 8):
        a(f"v_add_f32_dpp v{v}, v{v}, v{v} row_shr:{sh} row_mask:0xf bank_mask:0xf bound_ctrl:0")
    a(f"v_add_f32_dpp v{v}, v{v}, v{v} row_bcast:15 row_mask:0xa bank_mask:0xf")
    a(f"v_add_f32_dpp v{v}, v{v}, v{v} row_bcast:31 row_mask:0xc bank_mask:0xf")
    a(f"v_readlane_b32 s{sdst}, v{v}, 63")


def rne1(a, v):
    a(f"v_cvt_pk_bf16_f32 v{v}, v{v}, v{v}")
    a(f"v_and_b32 v{v}, 0xffff0000, v{v}")


def unpack8(a, pk, x):
    for i in range(4):
        a(f"v_lshlrev_b32 v{x + 2 * i}, 16, v{pk + i}")
        a(f"v_and_b32 v{x + 2 * i + 1}, 0xffff0000, v{pk + i}")


def ln_row(a, x, t, pk, s0, s_eps, s_inv):
    a(f"v_add_f32 v{t}, v{x}, v{x + 1}")
    a(f"v_add_f32 v{t + 1}, v{x + 2}, v{x + 3}")
    a(f"v_add_f32 v{t + 2}, v{x + 4}, v{x + 5}")
    a(f"v_add_f32 v{t + 3}, v{x + 6}, v{x + 7}")
    a(f"v_add_f32 v{t}, v{t}, v{t + 1}")
    a(f"v_add_f32 v{t + 2}, v{t + 2}, v{t + 3}")
    a(f"v_add_f32 v{t}, v{t}, v{t + 2}")
    wave_sum(a, t, s0)
    a(f"v_mov_b32 v{t + 8}, s{s_inv}")
    a(f"v_mul_f32 v{t + 8}, s{s0}, v{t + 8}")
    for i in range(8):
        a(f"v_sub_f32 v{t + i}, v{x + i}, v{t + 8}")
    a(f"v_mul_f32 v{t + 9}, v{t}, v{t}")
    for i in range(1, 8):
        a(f"v_fmac_f32 v{t + 9}, v{t + i}, v{t + i}")
    wave_sum(a, t + 9, s0)
    a(f"v_mov_b32 v{t + 9}, s{s_inv}")
    a(f"v_mul_f32 v{t + 9}, s{s0}, v{t + 9}")
    rne1(a, t + 8)
    rne1(a, t + 9)
    a(f"v_add_f32 v{t + 9}, s{s_eps}, v{t + 9}")
    rne1(a, t + 9)
    a(f"v_sqrt_f32 v{t + 9}, v{t + 9}")
    rne1(a, t + 9)
    a(f"v_rcp_f32 v{t + 9}, v{t + 9}")
    for i in range(8):
        a(f"v_sub_f32 v{t + i}, v{x + i}, v{t + 8}")
    for i in range(4):
        a(f"v_cvt_pk_bf16_f32 v{pk + i}, v{t + 2 * i}, v{t + 2 * i + 1}")
    unpack8(a, pk, t)
    for i in range(8):
        a(f"v_mul_f32 v{t + i}, v{t + i}, v{t + 9}")
    for i in range(4):
        a(f"v_cvt_pk_bf16_f32 v{pk + i}, v{t + 2 * i}, v{t + 2 * i + 1}")


def kernel_begin(a, label):
    a.raw(f".globl {label}\n.p2align 8\n.type {label},@function")
    a.label(label)


def kernel_desc(label, vgpr=256, sgpr=102):
    return f""".amdhsa_kernel {label}
  .amdhsa_next_free_vgpr {vgpr}
  .amdhsa_next_free_sgpr {sgpr}
  .amdhsa_accum_offset {(vgpr + 3) // 4 * 4}
  .amdhsa_group_segment_fixed_size 0
  .amdhsa_kernarg_size 112
  .amdhsa_user_sgpr_count 2
  .amdhsa_user_sgpr_kernarg_segment_ptr 1
  .amdhsa_system_sgpr_workgroup_id_x 1
.end_amdhsa_kernel
"""


import os
PROF = int(os.environ.get("PROF", "0"))
PROF_WAVE = int(os.environ.get("PROF_WAVE", "0"))
sPROF = 78
WS_PROF = 0x8000000


def stamp(a, i):
    if not PROF:
        return
    if i == 0:
        a("s_memrealtime s[96:97]")
        a("s_waitcnt lgkmcnt(0)")
        a("s_mov_b32 s94, s96")
    a("s_memrealtime s[96:97]" if PROF == 2 else "s_memtime s[96:97]")
    a("s_waitcnt lgkmcnt(0)")
    a(f"s_mov_b32 s{sPROF + i}, s96")


def prof_dump(a, n, sID, sW, launch=0, va=2, vb=3):
    if not PROF:
        return
    lab = f"PROF_SKIP_{len(a.items)}"
    a(f"s_cmp_lg_u32 s{sW}, {PROF_WAVE}")
    a(f"s_cbranch_scc1 {lab}")
    a("s_memrealtime s[96:97]")
    a("s_waitcnt lgkmcnt(0)")
    a("s_mov_b32 s95, s96")
    a(f"s_load_dwordx2 s[96:97], s[0:1], {KA_WS}")
    a("s_waitcnt lgkmcnt(0)")
    a(f"s_mov_b32 s98, {hex(WS_SIZE)}")
    a("s_mov_b32 s99, 0x00020000")
    a(f"s_lshl_b32 s93, s{sID}, 6")
    a(f"s_add_u32 s93, s93, {WS_PROF + launch * 0x10000}")
    a(f"v_mov_b32 v{va}, 0")
    a(f"v_mov_b32 v{vb}, s94")
    a(f"buffer_store_dword v{vb}, v{va}, s[96:99], s93 offen")
    a(f"v_mov_b32 v{vb}, s95")
    a(f"buffer_store_dword v{vb}, v{va}, s[96:99], s93 offen offset:4")
    for i in range(1, n):
        a(f"s_sub_u32 s{sPROF + i}, s{sPROF + i}, s{sPROF}")
        a(f"v_mov_b32 v{vb}, s{sPROF + i}")
        a(f"buffer_store_dword v{vb}, v{va}, s[96:99], s93 offen offset:{4 * (i + 1)}")
    if not os.environ.get("FUSE3"):
        a("s_waitcnt vmcnt(0)")
    a.label(lab)

LAUNCH = [0]

FUSE = int(os.environ.get("FUSE", "0"))
sFB = 100
sEV = 76
sNON = 77
FLAGV = 8
WS_HF = 0xE90000 + WS_BASE
HF_X, HF_K, HF_R = 0, 16 * 128, 48 * 128
FUSE3 = int(os.environ.get("FUSE3", "0")) if FUSE else 0
TILEB = 98304
HF_C = 64 * 128
HF_B = 80 * 128
HF_W = 48 * 128
POLLS = 100000
PSLEEP = int(os.environ.get("PSLEEP", "4"))
LDF = " sc1" if FUSE else ""


def flag_base(a, sws):
    a(f"s_add_u32 s{sFB}, s{sws}, {hex(WS_HF)}")
    a(f"s_addc_u32 s{sFB + 1}, s{sws + 1}, 0")


def flag_store(a, sW, soff, va, vb, lab, once=False, val=None):
    a(f"s_cmp_lg_u32 s{sW}, 0")
    a(f"s_cbranch_scc1 {lab}")
    if once:
        a(f"s_cmp_eq_i32 s{soff}, -1")
        a(f"s_cbranch_scc1 {lab}")
    a(f"v_mov_b32 v{va}, s{soff}")
    a(f"v_mov_b32 v{vb}, s{sNON if val is None else val}")
    a("s_mov_b64 exec, 1")
    a(f"global_store_dword v{va}, v{vb}, s[{sFB}:{sFB + 1}] sc1")
    a("s_mov_b64 exec, -1")
    a.label(lab)
    if once:
        a(f"s_mov_b32 s{soff}, -1")


def flag_pair(a, sW, lab):
    a(f"s_cmp_lg_u32 s{sW}, 0")
    a(f"s_cbranch_scc1 {lab}")
    a(f"v_mov_b32 v9, s{sNON}")
    a("s_mov_b64 exec, 3")
    a(f"global_store_dword v8, v9, s[{sFB}:{sFB + 1}] sc1")
    a("s_mov_b64 exec, -1")
    a.label(lab)


def poll_load(va, vd, n=1):
    if n == 4:
        return f"global_load_dwordx4 v[{vd}:{vd + 3}], v{va}, s[{sFB}:{sFB + 1}] sc1"
    return f"global_load_dword v{vd}, v{va}, s[{sFB}:{sFB + 1}] sc1"


def poll_check(a, vd, n=1):
    if n == 4:
        for i in range(4):
            a(f"v_xor_b32 v{vd + i}, s{sNON}, v{vd + i}")
        a(f"v_or3_b32 v{vd}, v{vd}, v{vd + 1}, v{vd + 2}")
        a(f"v_or_b32 v{vd}, v{vd}, v{vd + 3}")
        a(f"v_cmp_ne_u32 vcc, 0, v{vd}")
    else:
        a(f"v_cmp_ne_u32 vcc, s{sNON}, v{vd}")


def poll_loop(a, va, vd, scnt, lab, n=1):
    a(f"s_mov_b32 s{scnt}, {POLLS}")
    a.label(lab)
    a(poll_load(va, vd, n))
    a("s_waitcnt vmcnt(0)")
    poll_check(a, vd, n)
    a(f"s_cbranch_vccz {lab}_D")
    a(f"s_sleep {PSLEEP}")
    a(f"s_sub_u32 s{scnt}, s{scnt}, 1")
    a(f"s_cmp_lg_u32 s{scnt}, 0")
    a(f"s_cbranch_scc1 {lab}")
    a.label(lab + "_D")


TOUCHV = int(os.environ.get("TOUCHV", "2"))
LATEF = int(os.environ.get("LATEF", "0"))
sPEND = 72
UNEV = int(os.environ.get("UNEV", "0"))
WOFINE = int(os.environ.get("WOFINE", "0"))
T64 = int(os.environ.get("T64", "0"))


def wo_touch(a, sID, sW, srank, s0, v0, fine=False, part=3, vd=None, tmp=None):
    if TOUCHV != 2 or os.environ.get("NOWO"):
        return
    vd = v0 + 1 if vd is None else vd
    if part & 1:
        a(f"s_load_dwordx2 s[{s0}:{s0 + 1}], s[0:1], {KA_WO}")
        a(f"s_load_dwordx2 s[{s0 + 2}:{s0 + 3}], s[0:1], {KA_W4}")
    if not part & 2:
        return
    r, t0, t1 = s0 + 4, s0 + 8, s0 + 9
    if tmp:
        t0, t1 = tmp
    a(f"s_lshl_b32 s{t0}, s{srank}, 3")
    a(f"s_add_u32 s{t0}, s{t0}, s{sW}")
    a(f"s_mul_i32 s{t0}, s{t0}, {(6144 if UNEV else 5632) if fine else 22528}")
    a(f"s_and_b32 s{t1}, s{sID}, 3")
    a(f"v_and_b32 v{v0}, 63, v1")
    a(f"v_lshlrev_b32 v{v0}, 7, v{v0}")
    if part & 1:
        a("s_waitcnt lgkmcnt(0)")
    srd(a, r, s0, SZ_W)
    a(f"s_cmp_eq_u32 s{t1}, {2 if UNEV else 3}")
    a(f"s_cselect_b32 s{r}, s{s0 + 2}, s{r}")
    a(f"s_cselect_b32 s{r + 1}, s{s0 + 3}, s{r + 1}")
    a(f"s_cselect_b32 s{r + 2}, {hex(SZ_W34)}, s{r + 2}")
    a(f"s_cselect_b32 s{t1}, 0, s{t1}")
    if UNEV:
        a(f"s_cmp_eq_u32 s{t1}, 3")
        a(f"s_mul_i32 s{t1}, s{t1}, {1536 * 1024}")
        a(f"s_cselect_b32 s{t1}, {2816 * 1024}, s{t1}")
    else:
        a(f"s_mul_i32 s{t1}, s{t1}, {1408 * 1024}")
    a(f"s_add_u32 s{t0}, s{t0}, s{t1}")
    if fine:
        a(f"s_mov_b32 exec_hi, {0xffff if UNEV else 0xfff}")
        a(f"buffer_load_dword v{vd}, v{v0}, s[{r}:{r + 3}], s{t0} offen")
        a("s_mov_b32 exec_hi, -1")
        return
    for i in range(3):
        a(f"buffer_load_dword v{vd}, v{v0}, s[{r}:{r + 3}], s{t0} offen")
        if T64:
            a(f"buffer_load_dword v{vd}, v{v0}, s[{r}:{r + 3}], s{t0} offen offset:64")
        if i < 2:
            a(f"s_add_u32 s{t0}, s{t0}, 8192")
```
